```python
import torch

def _softmax(x, axis=-1):
    return torch.softmax(x, dim=axis)
def _gelu(x):
    return torch.nn.functional.gelu(x, approximate="tanh")
def _silu(x):
    return torch.nn.functional.silu(x)
def _sigmoid(x):
    return torch.sigmoid(x)
def _layernorm(x, axis=-1, eps=1e-5):
    m = x.mean(dim=axis, keepdim=True)
    v = x.var(dim=axis, keepdim=True, unbiased=False)
    return (x - m) / torch.sqrt(v + eps)
def _scatter_add(tgt, idx, src, axis=0):
    return tgt.clone().index_add_(axis, idx, src)
def _segment_sum(src, seg, n):
    out = torch.zeros((n,) + src.shape[1:], dtype=src.dtype)
    return out.index_add_(0, seg, src)
def _pad(x, pw):
    flat = tuple(v for pair in reversed(pw) for v in pair)
    return torch.nn.functional.pad(x, flat)

kernel_name = 'sequential_preLN__grouped_kv_mqa__glu_gated_bilinear__prompt'

def setup_inputs():

    _w = (lambda a: (lambda t: t.to(torch.bfloat16) if t.is_floating_point() else t)(torch.as_tensor(a)))
    def _A_setup():
        B, S, D, H = 1, 2048, 640, 32
        Dh = D // H
        return {
            "x": _w((lambda *s: torch.randn(*s, dtype=torch.bfloat16) * 0.05)(B, S, D)),
            "wq": _w((lambda *s: torch.randn(*s, dtype=torch.bfloat16) * 0.05)(D, H * Dh)),
            "wk": _w((lambda *s: torch.randn(*s, dtype=torch.bfloat16) * 0.05)(D, Dh)),
            "wv": _w((lambda *s: torch.randn(*s, dtype=torch.bfloat16) * 0.05)(D, Dh)),
            "wo": _w((lambda *s: torch.randn(*s, dtype=torch.bfloat16) * 0.05)(H * Dh, D)),
        }
    _A_in = _A_setup()

    def _B_setup():
        B, S, D, F = 1, 2048, 640, 1728
        return {
            "x": _w((lambda *s: torch.randn(*s, dtype=torch.bfloat16) * 0.05)(B, S, D)),
            "w_gate": _w((lambda *s: torch.randn(*s, dtype=torch.bfloat16) * 0.8)(D, F) * (D ** -0.5)),
            "w_up": _w((lambda *s: torch.randn(*s, dtype=torch.bfloat16) * 0.8)(D, F) * (D ** -0.5)),
            "w_down": _w((lambda *s: torch.randn(*s, dtype=torch.bfloat16) * 0.8)(F, D) * (F ** -0.5)),
        }
    _B_in = _B_setup()

    return {
        "A_x": _A_in["x"],
        "A_wq": _A_in["wq"],
        "A_wk": _A_in["wk"],
        "A_wv": _A_in["wv"],
        "A_wo": _A_in["wo"],
        "B_x": _B_in["x"],
        "B_w_gate": _B_in["w_gate"],
        "B_w_up": _B_in["w_up"],
        "B_w_down": _B_in["w_down"],
    }

def reference(A_x, A_wq, A_wk, A_wv, A_wo, B_x, B_w_gate, B_w_up, B_w_down):
    def _A_ref(x, wq, wk, wv, wo):
        B, S, D = x.shape
        H = 32
        Dh = D // H
        q = (lambda x, *d: x.permute(*d))((x @ wq).reshape(B, S, H, Dh), 0, 2, 1, 3)
        k = x @ wk
        v = x @ wv
        scores = torch.einsum("bhqd,bkd->bhqk", q, k) * (Dh ** -0.5)
        p = _softmax(scores, axis=-1)
        o = torch.einsum("bhqk,bkd->bhqd", p, v)
        return (lambda x, *d: x.permute(*d))(o, 0, 2, 1, 3).reshape(B, S, H * Dh) @ wo

    def _B_ref(x, w_gate, w_up, w_down):
        g = torch.einsum("bsd,df->bsf", x, w_gate)
        u = torch.einsum("bsd,df->bsf", x, w_up)
        h = g * u
        return torch.einsum("bsf,fd->bsd", h, w_down)

    x = A_x
    h = x + _A_ref(_layernorm(x, axis=-1), A_wq, A_wk, A_wv, A_wo)
    h2 = h + _B_ref(_layernorm(h, axis=-1), B_w_gate, B_w_up, B_w_down)
    return h2
```

```python
import sys
NAME="sequential_preLN__grouped_kv_mqa__glu_gated_bilinear__prompt"
WS_Q=0x000000; WS_KF=0x300000; WS_VF=0x340000; WS_KM=0x380000; WS_CS=0x390000
WS_O=0x400000; WS_H=0x700000; WS_ST=0xA00000; WS_HH=0xB00000
ACT_BYTES=2048*640*2
class A:
    def __init__(s): s.L=[]; s.n=0
    def __call__(s,x): s.L.append("    "+x)
    def lab(s,x): s.L.append(x+":")
    cnt=0
    def uniq(s,p): A.cnt+=1; return f"L_{p}_{A.cnt}"
    def text(s): return "\n".join(s.L)+"\n"
def srd(a,d,slot,off,nbytes,tmp=None):
    if off:
        a(f"s_add_u32 s{d}, s{slot}, {off:#x}"); a(f"s_addc_u32 s{d+1}, s{slot+1}, 0")
    else:
        a(f"s_mov_b32 s{d}, s{slot}"); a(f"s_mov_b32 s{d+1}, s{slot+1}")
    a(f"s_mov_b32 s{d+2}, {nbytes:#x}"); a(f"s_mov_b32 s{d+3}, 0x20000")
def head(a,name,nwg):
    a.L.append(f".globl {name}\n.p2align 8\n.type {name},@function\n{name}:")
    a(f"s_cmp_ge_u32 s2, {nwg}"); a(f"s_cbranch_scc1 L_{name}_end")
    a("s_load_dwordx16 s[64:79], s[0:1], 0"); a("s_load_dwordx8 s[80:87], s[0:1], 64")
    a("v_and_b32 v1, 63, v0"); a("v_lshrrev_b32 v2, 6, v0"); a("s_nop 0"); a("v_readfirstlane_b32 s32, v2")
    a("s_waitcnt lgkmcnt(0)")
def tail(a,name,nv,nacc=0,ns=96):
    a.lab(f"L_{name}_end"); a("s_endpgm")
    acc=(nv+3)//4*4
    a.L.append(f""".section .rodata,"a"
.p2align 6
.amdhsa_kernel {name}
  .amdhsa_next_free_vgpr {acc+nacc if nacc else nv}
  .amdhsa_next_free_sgpr {ns}
  .amdhsa_accum_offset {acc}
  .amdhsa_group_segment_fixed_size 0
  .amdhsa_kernarg_size 96
  .amdhsa_user_sgpr_count 2
  .amdhsa_user_sgpr_kernarg_segment_ptr 1
  .amdhsa_system_sgpr_workgroup_id_x 1
.end_amdhsa_kernel
.text""")
PX,PWQ,PWK,PWV,PWO,PWG,PWU,PWD,POUT,PWS=64,66,68,70,72,76,78,80,82,86
def magic(n,maxq):
    m=(65536+n-1)//n
    assert all((q*m)>>16==q//n for q in range(maxq)),n
    return m
class Gemm:
    def __init__(g,a,BM,K,pitchA,regions,NS,PD,free,extra=None,accbase=None,jb=4):
        g.a=a;g.BM=BM;g.K=K;g.pitchA=pitchA;g.regions=regions;g.NS=NS;g.PD=PD;g.free=free;g.jb=jb
        g.TB=BM//64; g.nst=K//64; g.extra=extra or []
        g.tiles=[]
        for ri,(nc,pw,nt) in enumerate(regions):
            for t in range(nt): g.tiles.append((ri,t))
        g.NT=len(g.tiles)
        g.roff=[]; o=BM*128
        for (nc,pw,nt) in regions: g.roff.append(o); o+=64*nc*16
        g.ssz=o
        assert g.ssz*NS<=160*1024-64, g.ssz*NS
        g.lds=g.ssz*NS
    def slots(g):
        sl=[]
        nA=g.BM//8
        for j in range(nA//4): sl.append([('A',4*j+w) for w in range(4)])
        left=[]
        for ri,(nc,pw,nt) in enumerate(g.regions):
            for j in range(nc//4): sl.append([(ri,4*j+w) for w in range(4)])
            left+= [(ri,i) for i in range(nc//4*4,nc)]
        assert len(left)<=4
        if left: sl.append(left+[None]*(4-len(left)))
        return sl
    def prologue(g,v0):
        a=g.a; sl=g.slots(); g.sl=sl; g.voff=[v0+i for i in range(len(sl))]
        nv=v0+len(sl)
        T1,T2,T3=nv+20,nv+21,nv+22
        g.ldsoff=[]
        for j,s in enumerate(sl):
            kinds=set(x[0] for x in s if x)
            v=g.voff[j]
            if kinds=={'A'}:
                a(f"s_lshl_b32 s36, s32, 3"); a(f"s_add_u32 s36, s36, {32*j}")
                a(f"v_lshrrev_b32 v{T1}, 3, v1"); a(f"v_add_u32 v{T1}, s36, v{T1}")
                a(f"v_lshrrev_b32 v{T2}, 1, v{T1}"); a(f"v_xor_b32 v{T2}, v{T2}, v1"); a(f"v_and_b32 v{T2}, 7, v{T2}")
                a(f"v_add_u32 v{T1}, s33, v{T1}"); a(f"s_mov_b32 s36, {g.pitchA}")
                a(f"v_mul_lo_u32 v{T1}, v{T1}, s36"); a(f"v_lshl_add_u32 v{v}, v{T2}, 4, v{T1}")
            else:
                first=True
                for w,x in enumerate(s):
                    if x is None: continue
                    ri,i=x; nc,pw,nt=g.regions[ri]
                    vals=(i*64,magic(nc,nc*64),nc,pw)
                    if first:
                        for r,val in zip((37,38,39,41),vals): a(f"s_mov_b32 s{r}, {val}")
                        a(f"s_mov_b32 s42, s{34+ri}"); first=False; prev=(vals,ri)
                    elif (vals,ri)!=prev:
                        a(f"s_cmp_ge_u32 s32, {w}")
                        for r,val,pv in zip((37,38,39,41),vals,prev[0]):
                            if val!=pv: a(f"s_cselect_b32 s{r}, {val}, s{r}")
                        if ri!=prev[1]: a(f"s_cselect_b32 s42, s{34+ri}, s42")
                        prev=(vals,ri)
                a(f"v_add_u32 v{T1}, s37, v1")
                a(f"v_mul_lo_u32 v{T2}, v{T1}, s38"); a(f"v_lshrrev_b32 v{T2}, 16, v{T2}")
                a(f"v_mul_lo_u32 v{T3}, v{T2}, s39"); a(f"v_sub_u32 v{T1}, v{T1}, v{T3}")
                a(f"v_and_b32 v{T3}, 4, v{T2}"); a(f"v_lshlrev_b32 v{T3}, 1, v{T3}")
                a(f"v_and_b32 v{v}, 8, v{T2}"); a(f"v_lshrrev_b32 v{v}, 1, v{v}"); a(f"v_or_b32 v{T3}, v{T3}, v{v}")
                a(f"v_and_b32 v{T2}, 0xf3, v{T2}"); a(f"v_or_b32 v{T2}, v{T2}, v{T3}")
                a(f"v_mul_lo_u32 v{T2}, v{T2}, s41"); a(f"v_lshl_add_u32 v{T2}, v{T1}, 4, v{T2}")
                a(f"v_add_u32 v{v}, s42, v{T2}")
        last=sl[-1]; g.hasleft=any(x is None for x in last) or len(set(x[0] for x in last if x))>1
        if g.hasleft:
            regs=[x for x in last]
            r0=regs[0][0]
            for q in range(4): a(f"s_mov_b32 s{16+q}, s{8+4*r0+q}")
            a(f"s_mov_b32 s44, {g.roff[r0]+regs[0][1]*1024}"); a(f"s_mov_b32 s45, {64*g.regions[r0][1]}")
            for w in range(1,4):
                if regs[w] is None: continue
                ri,i=regs[w]
                a(f"s_cmp_ge_u32 s32, {w}")
                if ri!=r0:
                    for q in range(3): a(f"s_cselect_b32 s{16+q}, s{8+4*ri+q}, s{16+q}")
                    a(f"s_cselect_b32 s45, {64*g.regions[ri][1]}, s45")
                a(f"s_cselect_b32 s44, {g.roff[ri]+i*1024}, s44")
            g.nleft=sum(1 for x in last if x)
        a("s_lshl_b32 s46, s32, 10")
        g.nwin=(g.lds+65535)//65536
        g.vx=[[nv+ks*3+w for w in range(3)] for ks in range(2)]; nv+=6
        g.vw=[[nv+ri*3+w for w in range(3)] for ri in range(len(g.regions))]; nv+=6
        a(f"v_and_b32 v{T1}, 15, v1"); a(f"v_lshrrev_b32 v{T2}, 4, v1"); a(f"v_lshrrev_b32 v{T3}, 1, v{T1}")
        a(f"v_xor_b32 v{T2}, v{T2}, v{T3}"); a(f"v_lshlrev_b32 v{T2}, 4, v{T2}")
        a(f"s_mul_i32 s36, s32, {g.TB*16*128}"); a(f"v_lshl_add_u32 v{T2}, v{T1}, 7, v{T2}"); a(f"v_add_u32 v{g.vx[0][0]}, s36, v{T2}")
        a(f"v_xor_b32 v{g.vx[1][0]}, 64, v{g.vx[0][0]}")
        for ks in range(2):
            for w in range(1,3): a(f"v_add_u32 v{g.vx[ks][w]}, {65536*w}, v{g.vx[ks][0]}")
        a(f"v_lshrrev_b32 v{T1}, 5, v1"); a(f"v_lshlrev_b32 v{T1}, 4, v{T1}")
        a(f"v_bfe_u32 v{T2}, v1, 4, 1"); a(f"v_lshl_add_u32 v{T1}, v{T2}, 2, v{T1}")
        a(f"v_bfe_u32 v{T2}, v1, 2, 2"); a(f"v_add_u32 v{T1}, v{T1}, v{T2}")
        for ri,(nc,pw,nt) in enumerate(g.regions):
            a(f"v_mul_u32_u24 v{T2}, {nc*16}, v{T1}")
            a(f"v_and_b32 v{T3}, {3 if nc>1 else 1}, v1"); a(f"v_lshl_add_u32 v{g.vw[ri][0]}, v{T3}, 3, v{T2}")
            for w in range(1,3): a(f"v_add_u32 v{g.vw[ri][w]}, {65536*w}, v{g.vw[ri][0]}")
        return nv
    def dma(g,st):
        a=g.a; base=(st%g.NS)*g.ssz; n=0
        a(f"s_mov_b32 s47, {st*128}")
        for ri,(nc,pw,nt) in enumerate(g.regions): a(f"s_mov_b32 s{48+ri}, {st*64*pw}")
        for j,s in enumerate(g.sl):
            v=g.voff[j]
            if j==len(g.sl)-1 and g.hasleft:
                lab=None
                if g.nleft<4:
                    lab=a.uniq("sk"); a(f"s_cmp_ge_u32 s32, {g.nleft}"); a(f"s_cbranch_scc1 {lab}")
                a(f"s_mul_i32 s50, s45, {st}"); a(f"s_add_u32 m0, s44, {base}"); a("s_nop 0")
                a(f"buffer_load_dwordx4 v{v}, s[16:19], s50 offen lds")
                if lab: a.lab(lab)
                else: n+=1
            else:
                k,i=s[0]
                if k=='A': off=i*1024; sr=4; so=47
                else: off=g.roff[k]+i*1024; sr=8+4*k; so=48+k
                a(f"s_add_u32 m0, s46, {base+off}"); a("s_nop 0")
                a(f"buffer_load_dwordx4 v{v}, s[{sr}:{sr+3}], s{so} offen lds"); n+=1
        return n
    def ldsaddr(g,regs,off):
        return f"v{regs[off>>16]} offset:{off&65535}"
    def main(g,fr0,acc):
        a=g.a; NT=g.NT;TB=g.TB;PD=g.PD; nsteps=g.nst*2
        setsz=NT*4
        def wf(i,j): b=fr0+(i%PD)*setsz+j*4; return b
        def xf(i,tb): b=fr0+PD*setsz+(i%(PD+1))*TB*4+tb*4; return b
        g.nfr=fr0+PD*setsz+(PD+1)*TB*4
        q=[]
        def rd_w(i,j):
            st,ks=divmod(i,2); ri,t=g.tiles[j]; nc=g.regions[ri][0]; base=(st%g.NS)*g.ssz+g.roff[ri]
            for h in range(2):
                off=base+(32*ks+8*h)*nc*16+t*32
                a(f"ds_read_b64_tr_b16 v[{wf(i,j)+2*h}:{wf(i,j)+2*h+1}], {g.ldsaddr(g.vw[ri],off)}"); q.append((i,'w',j))
        def rd_x(i):
            st,ks=divmod(i,2); base=(st%g.NS)*g.ssz
            for tb in range(TB):
                a(f"ds_read_b128 v[{xf(i,tb)}:{xf(i,tb)+3}], {g.ldsaddr(g.vx[ks],base+tb*2048)}"); q.append((i,'x',tb))
        def need(tags):
            idx=max([n for n,t in enumerate(q) if t in tags],default=-1)
            if idx>=0:
                rem=len(q)-1-idx
                a(f"s_waitcnt lgkmcnt({min(rem,15)})")
                if rem<=15: del q[:idx+1]
                else: del q[:len(q)-15]
        issued=[];
        def sync(st):
            rem=sum(n for (s_,n) in issued if s_>st)
            if g.free=='cur': a(f"s_waitcnt vmcnt({rem}) lgkmcnt(0)"); q.clear()
            else: a(f"s_waitcnt vmcnt({rem})")
            a("s_barrier")
            nx=st-1+g.NS if g.free=='cur' else st-2+g.NS
            if st>0 and nx<g.nst and nx>=0 and all(s_!=nx for s_,_ in issued): issued.append((nx,g.dma(nx)))
        pre=g.NS
        for st in range(min(pre,g.nst)): issued.append((st,g.dma(st)))
        g.after_dma()
        synced=set()
        def ensure(i):
            st=i//2
            if st not in synced: sync(st); synced.add(st)
        for i in range(PD):
            ensure(i); rd_x(i)
            for j in range(NT): rd_w(i,j)
        for i in range(nsteps):
            nx=i+PD; defer=[]; xdone=False
            newst = nx<nsteps and (nx//2) not in synced
            for j in range(NT):
                need({(i,'w',j)}|{(i,'x',tb) for tb in range(TB)})
                for tb in range(TB):
                    c=acc(tb,j); src=c if i>0 else "0"
                    a(f"v_mfma_f32_16x16x32_bf16 {c}, v[{wf(i,j)}:{wf(i,j)+3}], v[{xf(i,tb)}:{xf(i,tb)+3}], {src}")
                for e in g.extra: e(i,j,wf(i,j),[xf(i,tb) for tb in range(TB)])
                if nx<nsteps:
                    if newst and g.free=='cur' and j<g.jb: defer.append(j); continue
                    if newst and (nx//2) not in synced:
                        ensure(nx)
                        for d in defer: rd_w(nx,d)
                        defer=[]
                    if not xdone: rd_x(nx); xdone=True
                    rd_w(nx,j)
    def after_dma(g): pass

F=lambda x: __import__("struct").unpack("<I",__import__("struct").pack("<f",x))[0]
import math
def tile_map_32x8(a):
    a("s_and_b32 s36, s2, 7"); a("s_lshr_b32 s37, s2, 3"); a("s_and_b32 s38, s37, 3")
    a("s_lshl_b32 s36, s36, 2"); a("s_add_u32 s36, s36, s38"); a("s_lshl_b32 s33, s36, 6"); a("s_lshr_b32 s51, s37, 2")
    a("s_mov_b32 s52, s36")
def cvt_store8(a,v0,v1,v2,v3,t0,off,srd_,imm=0):
    a(f"v_cvt_pk_bf16_f32 v{t0}, v{v0}, v{v1}"); a(f"v_cvt_pk_bf16_f32 v{t0+1}, v{v2}, v{v3}")
    a(f"buffer_store_dwordx2 v[{t0}:{t0+1}], v{off}, s[{srd_}:{srd_+3}], 0 offen offset:{imm}")
def k1():
    a=A(); name="k1_kernel"; head(a,name,256); tile_map_32x8(a)
    srd(a,4,PX,0,ACT_BYTES); srd(a,8,PWQ,0,640*1280)
    a("s_cmp_lt_u32 s51, 4"); a(f"s_cselect_b32 s12, s{PWK}, s{PWV}"); a(f"s_cselect_b32 s13, s{PWK+1}, s{PWV+1}")
    a("s_mov_b32 s14, 25600"); a("s_mov_b32 s15, 0x20000")
    srd(a,20,PWS,0,0x400000)
    a("s_mul_i32 s34, s51, 160"); a("s_and_b32 s35, s51, 3"); a("s_lshl_b32 s35, s35, 3")
    g=Gemm(a,64,640,1280,[(10,1280,5),(1,40,1)],NS=8,PD=2,free='prev')
    nv=g.prologue(2)
    ONES=nv; nv+=4; nv=(nv+3)//4*4; ONES=nv-4 if False else nv; nv+=4
    for r in range(4): a(f"v_mov_b32 v{ONES+r}, 0x3f803f80")
    ACC=nv; nv+=24; CS=nv; nv+=24; SM=nv; nv+=4; SQ=nv; nv+=4
    KMO=g.lds
    a(f"v_mov_b32 v{nv}, 0"); a(f"v_lshlrev_b32 v{nv+1}, 2, v1"); a(f"ds_write_b32 v{nv+1}, v{nv} offset:0")
    a.L=a.L[:-3]
    a(f"v_mov_b32 v{nv}, 0"); a(f"v_lshlrev_b32 v{nv+1}, 2, v1"); a(f"v_add_u32 v{nv+1}, {KMO}, v{nv+1}"); a(f"ds_write_b32 v{nv+1}, v{nv}")
    def ex(i,j,w,x):
        src=lambda b: f"v[{b}:{b+3}]" if i>0 else "0"
        a(f"v_mfma_f32_16x16x32_bf16 v[{CS+4*j}:{CS+4*j+3}], v[{w}:{w+3}], v[{ONES}:{ONES+3}], {src(CS+4*j)}")
        if j==0:
            a(f"v_mfma_f32_16x16x32_bf16 v[{SM}:{SM+3}], v[{ONES}:{ONES+3}], v[{x[0]}:{x[0]+3}], {src(SM)}")
        if j==1:
            a(f"v_mfma_f32_16x16x32_bf16 v[{SQ}:{SQ+3}], v[{x[0]}:{x[0]+3}], v[{x[0]}:{x[0]+3}], {src(SQ)}")
    g.extra=[ex]
    g.main(nv,lambda tb,j:f"v[{ACC+4*j}:{ACC+4*j+3}]")
    T=g.nfr; nvmax=T+16
    a("s_nop 7"); a("s_nop 7")
    a(f"v_and_b32 v{T}, 15, v1"); a(f"v_and_b32 v{T+1}, 3, v1")
    a(f"v_cmp_eq_u32 vcc, 1, v{T+1}"); a("s_nop 1"); a(f"v_cndmask_b32 v{T+2}, v{SQ}, v{SQ+1}, vcc")
    a(f"v_cmp_eq_u32 vcc, 2, v{T+1}"); a("s_nop 1"); a(f"v_cndmask_b32 v{T+2}, v{T+2}, v{SQ+2}, vcc")
    a(f"v_cmp_eq_u32 vcc, 3, v{T+1}"); a("s_nop 1"); a(f"v_cndmask_b32 v{T+2}, v{T+2}, v{SQ+3}, vcc")
    a(f"v_lshrrev_b32 v{T+3}, 2, v{T}"); a(f"v_lshl_add_u32 v{T+3}, v{T+3}, 4, v{T}"); a(f"v_lshlrev_b32 v{T+3}, 2, v{T+3}")
    a(f"ds_bpermute_b32 v{T+2}, v{T+3}, v{T+2}")
    MEAN,RS=T+4,T+5
    a(f"v_mul_f32 v{MEAN}, {F(1/640):#x}, v{SM}"); a("s_waitcnt lgkmcnt(0)")
    a(f"v_mul_f32 v{T+2}, {F(1/640):#x}, v{T+2}"); a(f"v_fma_f32 v{T+2}, -v{MEAN}, v{MEAN}, v{T+2}")
    a(f"v_max_f32 v{T+2}, 0, v{T+2}"); a(f"v_add_f32 v{T+2}, {F(1e-5):#x}, v{T+2}"); a(f"v_rsq_f32 v{RS}, v{T+2}"); a("s_nop 0")
    a(f"v_mul_f32 v{T+6}, {F(20**-0.5*math.log2(math.e)):#x}, v{RS}")
    TOK=T+7; a(f"s_lshl_b32 s36, s32, 4"); a("s_add_u32 s36, s36, s33"); a(f"v_add_u32 v{TOK}, s36, v{T}")
    G=T+8; a(f"v_lshrrev_b32 v{G}, 4, v1")
    a(f"v_mul_u32_u24 v{T+9}, 1280, v{TOK}"); a(f"v_lshl_add_u32 v{T+9}, v{G}, 3, v{T+9}"); a(f"v_add_u32 v{T+9}, s34, v{T+9}")
    for j in range(6):
        for r in range(4):
            a(f"v_fma_f32 v{ACC+4*j+r}, -v{MEAN}, v{CS+4*j+r}, v{ACC+4*j+r}")
            a(f"v_mul_f32 v{ACC+4*j+r}, v{ACC+4*j+r}, v{T+6 if j<5 else RS}")
        if j<5: cvt_store8(a,ACC+4*j,ACC+4*j+1,ACC+4*j+2,ACC+4*j+3,T+10+2*(j&1),T+9,20,imm=32*j)
    Y=ACC+20; P=T+14
    a(f"v_cvt_pk_bf16_f32 v{P}, v{Y}, v{Y+1}"); a(f"v_cvt_pk_bf16_f32 v{P+1}, v{Y+2}, v{Y+3}")
    D0=T+10; a("s_lshr_b32 s36, s35, 1"); a(f"v_lshl_add_u32 v{D0}, v{G}, 2, s36")
    TB_=T+11; a(f"v_lshrrev_b32 v{TB_}, 5, v{TOK}"); a(f"v_lshlrev_b32 v{TB_}, 11, v{TB_}")
    KAP=T+12; a(f"v_and_b32 v{KAP}, 31, v{TOK}")
    a("s_cmp_ge_u32 s51, 4"); a(f"s_cbranch_scc1 L_k1_v")
    AD=T+13
    a(f"v_lshrrev_b32 v{AD}, 3, v{D0}"); a(f"v_lshlrev_b32 v{AD}, 9, v{AD}")
    a(f"v_add_u32 v{AD}, v{AD}, v{TB_}"); a(f"v_lshl_add_u32 v{AD}, v{KAP}, 4, v{AD}")
    a(f"v_and_b32 v{T+9}, 7, v{D0}"); a(f"v_lshl_add_u32 v{AD}, v{T+9}, 1, v{AD}"); a(f"v_add_u32 v{AD}, {WS_KF:#x}, v{AD}")
    a(f"v_cmp_gt_u32 vcc, 2, v{G}"); a("s_and_saveexec_b64 s[40:41], vcc")
    a(f"buffer_store_dwordx2 v[{P}:{P+1}], v{AD}, s[20:23], 0 offen")
    a("s_mov_b64 exec, s[40:41]")
    for r in range(4):
        a(f"v_and_b32 v{Y+r}, 0x7fffffff, v{Y+r}")
    for rot in (8,4,2,1):
        a("s_nop 1")
        for r in range(4): a(f"v_max_f32_dpp v{Y+r}, v{Y+r}, v{Y+r} row_ror:{rot} row_mask:0xf bank_mask:0xf")
    a(f"v_lshlrev_b32 v{T+9}, 2, v{D0}"); a(f"v_add_u32 v{T+9}, {KMO}, v{T+9}")
    a(f"v_cmp_gt_u32 vcc, 2, v{G}"); a("s_and_saveexec_b64 s[40:41], vcc")
    for r in range(4): a(f"ds_max_f32 v{T+9}, v{Y+r} offset:{4*r}")
    a("s_mov_b64 exec, s[40:41]")
    a("s_cmp_lg_u32 s51, 3"); a("s_cbranch_scc1 L_k1_kskip")
    a(f"v_mov_b32 v{P}, 0x3f803f80"); a(f"v_mov_b32 v{P+1}, 0x00003f80")
    a(f"v_cmp_eq_u32 vcc, 1, v{G}"); a("s_and_saveexec_b64 s[40:41], vcc")
    a(f"buffer_store_dwordx2 v[{P}:{P+1}], v{AD}, s[20:23], 0 offen offset:8")
    a("s_mov_b64 exec, s[40:41]")
    Z=(T+16+3)//4*4; nvmax=Z+4
    for r in range(4): a(f"v_mov_b32 v{Z+r}, 0")
    a(f"v_lshl_add_u32 v{AD}, v{KAP}, 4, v{TB_}"); a(f"v_add_u32 v{AD}, {WS_KF+1536:#x}, v{AD}")
    a(f"v_cmp_eq_u32 vcc, 2, v{G}"); a("s_and_saveexec_b64 s[40:41], vcc")
    a(f"buffer_store_dwordx4 v[{Z}:{Z+3}], v{AD}, s[20:23], 0 offen")
    a("s_mov_b64 exec, s[40:41]")
    a.lab("L_k1_kskip")
    a("s_waitcnt lgkmcnt(0)"); a("s_barrier")
    a("s_cmp_lg_u32 s32, 0"); a(f"s_cbranch_scc1 L_{name}_end")
    a("s_lshr_b32 s36, s35, 1"); a(f"v_add_u32 v{T}, s36, v1"); a(f"v_lshlrev_b32 v{T}, 2, v{T}")
    a(f"v_add_u32 v{T+1}, {KMO}, v{T}"); a(f"ds_read_b32 v{T+2}, v{T+1}")
    a("s_lshl_b32 s36, s52, 7"); a(f"s_add_u32 s36, s36, {WS_KM:#x}"); a(f"v_add_u32 v{T}, s36, v{T}")
    a("v_cmp_gt_u32 vcc, 8, v1"); a("s_and_saveexec_b64 s[40:41], vcc"); a("s_waitcnt lgkmcnt(0)")
    a(f"buffer_store_dword v{T+2}, v{T}, s[20:23], 0 offen")
    a(f"s_branch L_{name}_end")
    a.lab("L_k1_v")
    AD=T+13
    a(f"v_lshrrev_b32 v{AD}, 4, v{KAP}"); a(f"v_lshl_add_u32 v{AD}, v{AD}, 10, v{TB_}")
    a(f"v_bfe_u32 v{T+9}, v{KAP}, 2, 1"); a(f"v_lshl_add_u32 v{AD}, v{T+9}, 9, v{AD}")
    a(f"v_and_b32 v{T+9}, 3, v{KAP}"); a(f"v_lshl_add_u32 v{AD}, v{T+9}, 1, v{AD}")
    a(f"v_bfe_u32 v{T+9}, v{KAP}, 3, 1"); a(f"v_lshl_add_u32 v{AD}, v{T+9}, 3, v{AD}")
    a(f"v_lshl_add_u32 v{AD}, v{D0}, 4, v{AD}"); a(f"v_add_u32 v{AD}, {WS_VF:#x}, v{AD}")
    a(f"v_cmp_gt_u32 vcc, 2, v{G}"); a("s_and_saveexec_b64 s[40:41], vcc")
    a(f"buffer_store_short v{P}, v{AD}, s[20:23], 0 offen"); a(f"buffer_store_short_d16_hi v{P}, v{AD}, s[20:23], 0 offen offset:16")
    a(f"buffer_store_short v{P+1}, v{AD}, s[20:23], 0 offen offset:32"); a(f"buffer_store_short_d16_hi v{P+1}, v{AD}, s[20:23], 0 offen offset:48")
    a("s_mov_b64 exec, s[40:41]")
    a("s_cmp_lg_u32 s51, 7"); a(f"s_cbranch_scc1 L_{name}_end")
    a(f"v_mov_b32 v{P}, 0x3f80"); a(f"v_cmp_eq_u32 vcc, 2, v{G}"); a("s_and_saveexec_b64 s[40:41], vcc")
    a(f"buffer_store_short v{P}, v{AD}, s[20:23], 0 offen")
    tail(a,name,nvmax)
    return a.text(), g.lds+128

def k2():
    a=A(); name="k2_kernel"; head(a,name,256)
    QA0,QA1,QB0,QB1=4,8,12,16
    KS=[20,28]; VS=[36,44]; SA,SB=52,68; PA,PB=84,92; OA,OB=100,116
    T=132; R0,R1=2,3
    FLAG=131072; CSL=131072+64; MXL=131072+256
    srd(a,4,PWS,WS_KF,0x60000); srd(a,8,PWS,0,0x800000)
    a("s_lshr_b32 s33, s2, 2"); a("s_and_b32 s34, s2, 3")
    a("s_and_b32 s35, s32, 3"); a("s_lshr_b32 s36, s32, 2")
    a("s_lshr_b32 s37, s32, 1"); a("s_and_b32 s38, s32, 1")
    a("s_lshl_b32 s40, s37, 14"); a("s_lshl_b32 s39, s38, 13"); a("s_add_u32 s40, s40, s39")
    a("s_and_b32 s41, s37, 1"); a("s_lshl_b32 s41, s41, 18")
    a("s_lshr_b32 s42, s37, 1"); a("s_lshl_b32 s42, s42, 16"); a("s_add_u32 s41, s41, s42"); a("s_add_u32 s41, s41, s39")
    a("v_lshlrev_b32 v132, 4, v1")
    VD=252; a(f"v_lshlrev_b32 v{VD}, 4, v1")
    def dma(st):
        for hf in range(2):
            a(f"s_add_u32 m0, s40, {(st&1)*65536+hf*4096}"); a(f"s_add_u32 s43, s41, {st*16384+hf*4096}")
            for i in range(4): a(f"buffer_load_dwordx4 v{VD}, s[4:7], s43 offen offset:{i*1024} lds")
    a("s_mov_b32 s60, 0")
    a("s_lshl_b32 s39, s36, 15"); a(f"v_add_u32 v{R0}, s39, v{VD}"); a(f"v_add_u32 v{R1}, 65536, v{R0}")
    a(f"v_mov_b32 v{T}, 0"); a(f"v_lshlrev_b32 v{T+1}, 2, v1"); a(f"v_add_u32 v{T+1}, {FLAG}, v{T+1}"); a(f"ds_write_b32 v{T+1}, v{T}")
    TOK=250; HI=251; QOFF=249
    a(f"v_and_b32 v{TOK}, 31, v1"); a("s_lshl_b32 s39, s33, 5"); a(f"v_add_u32 v{TOK}, s39, v{TOK}"); a(f"v_lshrrev_b32 v{HI}, 5, v1")
    a("s_lshl_b32 s39, s34, 3"); a("s_lshl_b32 s44, s35, 1"); a("s_add_u32 s39, s39, s44"); a("s_mul_i32 s39, s39, 40")
    a(f"v_mul_u32_u24 v{QOFF}, 1280, v{TOK}"); a(f"v_add_u32 v{QOFF}, s39, v{QOFF}")
    a(f"v_lshl_add_u32 v{T}, v{HI}, 4, v{QOFF}")
    a(f"buffer_load_dwordx4 v[{QA0}:{QA0+3}], v{T}, s[8:11], 0 offen"); a(f"buffer_load_dwordx2 v[{QA1}:{QA1+1}], v{QOFF}, s[8:11], 0 offen offset:32")
    a(f"buffer_load_dwordx4 v[{QB0}:{QB0+3}], v{T}, s[8:11], 0 offen offset:40"); a(f"buffer_load_dwordx2 v[{QB1}:{QB1+1}], v{QOFF}, s[8:11], 0 offen offset:72")
    KM=T+4
    a(f"v_lshlrev_b32 v{T+1}, 4, v1"); a(f"v_add_u32 v{T+1}, {WS_KM:#x}, v{T+1}")
    for i in range(4): a(f"buffer_load_dwordx4 v[{KM+4*i}:{KM+4*i+3}], v{T+1}, s[8:11], 0 offen offset:{1024*i}")
    CL=T+20
    a("s_cmp_lt_u32 s2, 108"); a(f"s_cselect_b32 s12, s{PWG}, s{PWU}"); a(f"s_cselect_b32 s13, s{PWG+1}, s{PWU+1}")
    a(f"s_mov_b32 s14, {640*3456}"); a("s_mov_b32 s15, 0x20000")
    a("s_sub_u32 s39, s2, 108"); a("s_cmp_lt_u32 s2, 108"); a("s_cselect_b32 s39, s2, s39"); a("s_lshl_b32 s39, s39, 5")
    a("s_cmp_ge_u32 s2, 216"); a(f"s_cselect_b32 s39, {640*3456}, s39")
    a(f"v_lshrrev_b32 v{T+2}, 1, v0"); a(f"v_mul_u32_u24 v{T+2}, 3456, v{T+2}"); a(f"v_and_b32 v{T+3}, 1, v0")
    a(f"v_lshl_add_u32 v{T+2}, v{T+3}, 4, v{T+2}"); a(f"v_add_u32 v{T+2}, s39, v{T+2}")
    for i in range(3):
        a(f"s_mov_b32 s44, {256*3456*i}"); a(f"buffer_load_dwordx4 v[{CL+4*i}:{CL+4*i+3}], v{T+2}, s[12:15], s44 offen")
    dma(0); dma(1)
    SEL=T+32
    a(f"v_and_b32 v{T+3}, 7, v1")
    for q in range(4):
        a(f"v_mov_b32 v{SEL+q}, 0"); a(f"v_cmp_eq_u32 vcc, {2*q}, v{T+3}"); a(f"v_mov_b32 v{T+1}, 0x3f80"); a("s_nop 0"); a(f"v_cndmask_b32 v{SEL+q}, v{SEL+q}, v{T+1}, vcc")
        a(f"v_cmp_eq_u32 vcc, {2*q+1}, v{T+3}"); a(f"v_mov_b32 v{T+1}, 0x3f800000"); a("s_nop 0"); a(f"v_cndmask_b32 v{SEL+q}, v{SEL+q}, v{T+1}, vcc")
    a("s_waitcnt vmcnt(19)")
    for r in range(4):
        a(f"v_max3_f32 v{KM+r}, v{KM+r}, v{KM+4+r}, v{KM+8+r}"); a(f"v_max_f32 v{KM+r}, v{KM+r}, v{KM+12+r}")
    a("s_nop 1")
    for r in range(4): a(f"v_max_f32_dpp v{KM+r}, v{KM+r}, v{KM+r} row_ror:8 row_mask:0xf bank_mask:0xf")
    for r in range(4): a(f"ds_swizzle_b32 v{KM+4+r}, v{KM+r} offset:0x401F")
    a("s_waitcnt lgkmcnt(0)")
    for r in range(4): a(f"v_max_f32 v{KM+r}, v{KM+r}, v{KM+4+r}"); a(f"v_mov_b32 v{KM+4+r}, v{KM+r}")
    a("s_nop 1")
    for r in range(4): a(f"v_permlane32_swap_b32 v{KM+r}, v{KM+4+r}")
    for r in range(4): a(f"v_max_f32 v{KM+r}, v{KM+r}, v{KM+4+r}")
    a(f"v_mul_f32 v{KM+4}, v{KM}, v{KM}")
    for r in range(1,4): a(f"v_fmac_f32 v{KM+4}, v{KM+r}, v{KM+r}")
    a(f"v_and_b32 v{T+3}, 7, v1"); a(f"v_cmp_gt_u32 vcc, 5, v{T+3}"); a("s_nop 1"); a(f"v_cndmask_b32 v{KM+4}, 0, v{KM+4}, vcc")
    for rot in (1,2,4):
        a("s_nop 1"); a(f"v_add_f32_dpp v{KM+4}, v{KM+4}, v{KM+4} row_ror:{rot} row_mask:0xf bank_mask:0xf")
    KB=248
    a(f"v_sqrt_f32 v{KB}, v{KM+4}"); a("s_nop 0"); a(f"v_mul_f32 v{KB}, {F(1.03):#x}, v{KB}")
    a("s_waitcnt vmcnt(16)")
    for i in range(3):
        a(f"v_mfma_f32_16x16x32_bf16 v[{KM}:{KM+3}], v[{CL+4*i}:{CL+4*i+3}], v[{SEL}:{SEL+3}], {'0' if i==0 else f'v[{KM}:{KM+3}]'}")
    def setm(f1,mreg):
        a(f"v_sub_f32 v{T}, 0, v{mreg}"); a(f"v_and_b32 v{T+1}, 0xffff0000, v{T}"); a(f"v_sub_f32 v{T}, v{T}, v{T+1}")
        a(f"v_and_b32 v{T+2}, 0xffff0000, v{T}"); a(f"v_sub_f32 v{T}, v{T}, v{T+2}")
        a(f"v_lshrrev_b32 v{T+1}, 16, v{T+1}"); a(f"v_or_b32 v{f1+2}, v{T+1}, v{T+2}"); a(f"v_lshrrev_b32 v{f1+3}, 16, v{T}")
        a(f"v_cmp_eq_u32 vcc, 0, v{HI}"); a("s_nop 1")
        for r in range(4): a(f"v_cndmask_b32 v{f1+r}, 0, v{f1+r}, vcc")
    for (f0,f1) in ((QA0,QA1),(QB0,QB1)):
        a(f"v_cmp_eq_u32 vcc, 0, v{HI}"); a("s_nop 1")
        for r in range(2): a(f"v_cndmask_b32 v{f1+r}, 0, v{f1+r}, vcc")
        first=True
        for rg in [f0,f0+1,f0+2,f0+3,f1,f1+1]:
            a(f"v_lshlrev_b32 v{T}, 16, v{rg}"); a(f"v_and_b32 v{T+1}, 0xffff0000, v{rg}")
            if first: a(f"v_mul_f32 v{T+3}, v{T}, v{T}"); first=False
            else: a(f"v_fmac_f32 v{T+3}, v{T}, v{T}")
            a(f"v_fmac_f32 v{T+3}, v{T+1}, v{T+1}")
        a(f"v_mov_b32 v{T+2}, v{T+3}"); a("s_nop 1"); a(f"v_permlane32_swap_b32 v{T+3}, v{T+2}"); a(f"v_add_f32 v{T+3}, v{T+3}, v{T+2}")
        a(f"v_sqrt_f32 v{T+3}, v{T+3}"); a("s_nop 0"); a(f"v_mul_f32 v{T+3}, v{T+3}, v{KB}")
        setm(f1,T+3)
    a("s_nop 4")
    a(f"v_add_f32 v{KM}, v{KM}, v{KM+2}"); a(f"v_add_f32 v{KM+1}, v{KM+1}, v{KM+3}")
    a("s_waitcnt lgkmcnt(0)"); a("s_barrier")
    a(f"v_and_b32 v{T}, 15, v1"); a(f"v_lshlrev_b32 v{T+1}, 2, v{T}"); a(f"v_add_u32 v{T+1}, {CSL}, v{T+1}")
    a(f"v_cmp_gt_u32 vcc, 8, v{T}"); a("s_and_saveexec_b64 s[46:47], vcc")
    a(f"ds_add_f32 v{T+1}, v{KM}"); a(f"ds_add_f32 v{T+1}, v{KM+1} offset:32")
    a("s_mov_b64 exec, s[46:47]")
    a.lab("L_k2_main")
    def rdK(t,st_):
        R=R0 if ((t>>3)&1)==0 else R1; o=(t&7)*2048
        for f in range(2): a(f"ds_read_b128 v[{KS[t&1]+4*f}:{KS[t&1]+4*f+3}], v{R} offset:{o+1024*f}")
    def rdV(t):
        R=R0 if ((t>>3)&1)==0 else R1; o=16384+(t&7)*2048
        for f in range(2): a(f"ds_read_b128 v[{VS[t&1]+4*f}:{VS[t&1]+4*f+3}], v{R} offset:{o+1024*f}")
    def qk(S,Q0,Q1,t,p):
        k=KS[t&1]
        if p==0: a(f"v_mfma_f32_32x32x16_bf16 v[{S}:{S+15}], v[{k}:{k+3}], v[{Q0}:{Q0+3}], 0")
        else: a(f"v_mfma_f32_32x32x16_bf16 v[{S}:{S+15}], v[{k+4}:{k+7}], v[{Q1}:{Q1+3}], v[{S}:{S+15}]")
    def pv(O,P,t,p):
        v=VS[t&1]+4*p; c=f"v[{O}:{O+15}]" if not(t==0 and p==0) else "0"
        a(f"v_mfma_f32_32x32x16_bf16 v[{O}:{O+15}], v[{v}:{v+3}], v[{P+4*p}:{P+4*p+3}], {c}")
    e=lambda S,i: a(f"v_exp_f32 v{S+i}, v{S+i}")
    c=lambda S,P,k: a(f"v_cvt_pk_bf16_f32 v{P+k}, v{S+2*k}, v{S+2*k+1}")
    a("s_waitcnt vmcnt(8) lgkmcnt(0)"); a("s_barrier")
    rdK(0,0); rdV(0); a("s_waitcnt lgkmcnt(2)")
    qk(SA,QA0,QA1,0,0); qk(SA,QA0,QA1,0,1); a("s_nop 7"); a("s_nop 7")
    NT=32
    def phase(X,PX,OX,Y,tX,tY,prev,mid):
        S=X
        if Y: qk(Y[0],Y[1],Y[2],tY,0)
        for i in range(4): e(S,i)
        if prev: pv(prev[0],prev[1],prev[2],1)
        mid()
        for i in range(4,8): e(S,i)
        c(S,PX,0); c(S,PX,1)
        if Y: qk(Y[0],Y[1],Y[2],tY,1)
        c(S,PX,2); c(S,PX,3)
        for i in range(8,12): e(S,i)
        pv(OX,PX,tX,0)
        for i in range(12,16): e(S,i)
        for k in range(4,8): c(S,PX,k)
    for t in range(NT):
        def midA():
            if t+1<NT:
                if (t+1)%8==0:
                    st=(t+1)//8
                    a("s_waitcnt vmcnt(0) lgkmcnt(0)"); a("s_barrier")
                    if st+1<4: dma(st+1)
                rdK(t+1,0); rdV(t+1)
        a("s_waitcnt lgkmcnt(0)")
        phase(SA,PA,OA,(SB,QB0,QB1),t,t,(OB,PB,t-1) if t>0 else None,midA)
        if t+1<NT: a("s_waitcnt lgkmcnt(2)")
        phase(SB,PB,OB,(SA,QA0,QA1) if t+1<NT else None,t,t+1,(OA,PA,t),lambda:None)
    a("s_nop 1"); pv(OB,PB,NT-1,1)
    a("s_nop 7"); a("s_nop 7")
    a("s_barrier")
    a("s_lshl_b32 s39, s35, 13")
    a(f"v_add_u32 v{T}, s39, v{VD}")
    a("s_cmp_eq_u32 s36, 0"); a("s_cbranch_scc1 L_k2_lo")
    for b,O in enumerate((OA,OB)):
        for q in range(3): a(f"ds_write_b128 v{T}, v[{O+4*q}:{O+4*q+3}] offset:{(b*3+q)*1024}")
    a("s_waitcnt lgkmcnt(0)"); a("s_barrier"); a("s_branch L_k2_chk")
    a.lab("L_k2_lo")
    a("s_barrier")
    for b in range(2):
        for q in range(3): a(f"ds_read_b128 v[{SA+(b*3+q)*4}:{SA+(b*3+q)*4+3}], v{T} offset:{(b*3+q)*1024}")
    a("s_waitcnt lgkmcnt(0)")
    for b,O in enumerate((OA,OB)):
        for r in range(12): a(f"v_add_f32 v{O+r}, v{O+r}, v{SA+b*12+r}")
    LA,LB=T+2,T+3
    for O,Lr in ((OA,LA),(OB,LB)):
        a(f"v_mov_b32 v{T+4}, v{O+8}"); a(f"v_mov_b32 v{Lr}, v{O+8}"); a("s_nop 1"); a(f"v_permlane32_swap_b32 v{T+4}, v{Lr}")
    a(f"v_min_f32 v{T+4}, v{LA}, v{LB}"); a(f"v_add_f32 v{T+5}, v{LA}, v{LB}")
    a(f"v_mov_b32 v{T+6}, {F(2.0**-90):#x}")
    a(f"v_cmp_nge_f32 vcc, v{T+4}, v{T+6}"); a(f"v_cmp_u_f32 s[46:47], v{T+5}, v{T+5}"); a("s_nop 1"); a("s_or_b64 vcc, vcc, s[46:47]")
    a("s_cbranch_vccz L_k2_chk")
    a(f"v_mov_b32 v{T+4}, 1"); a(f"v_mov_b32 v{T+5}, {FLAG}"); a(f"ds_write_b32 v{T+5}, v{T+4}"); a("s_waitcnt lgkmcnt(0)")
    a.lab("L_k2_chk")
    a("s_barrier")
    a(f"v_mov_b32 v{T+5}, {FLAG}"); a(f"ds_read_b32 v{T+4}, v{T+5}"); a(f"ds_read_b32 v{T+6}, v{T+5} offset:64")
    a("s_waitcnt lgkmcnt(0)"); a(f"v_readfirstlane_b32 s44, v{T+4}")
    a("s_add_u32 s44, s44, s60"); a("s_cmp_eq_u32 s44, 1"); a("s_cbranch_scc0 L_k2_fin")
    a("s_cmp_eq_u32 s60, 0"); a("s_cbranch_scc1 L_k2_fallback")
    a.lab("L_k2_fin")
    a("s_cmp_eq_u32 s32, 4"); a("s_cbranch_scc0 L_k2_nocs")
    a("s_cmp_lt_u32 s2, 216"); a("s_cbranch_scc0 L_k2_nocs")
    a(f"v_lshlrev_b32 v{T+5}, 2, v1"); a(f"v_add_u32 v{T+7}, {CSL}, v{T+5}"); a(f"ds_read_b32 v{T+6}, v{T+7}")
    a("s_lshl_b32 s39, s2, 6"); a(f"s_add_u32 s39, s39, {WS_CS:#x}"); a(f"v_add_u32 v{T+5}, s39, v{T+5}")
    a("v_cmp_gt_u32 vcc, 16, v1"); a("s_and_saveexec_b64 s[46:47], vcc"); a("s_waitcnt lgkmcnt(0)")
    a(f"buffer_store_dword v{T+6}, v{T+5}, s[8:11], 0 offen"); a("s_mov_b64 exec, s[46:47]")
    a.lab("L_k2_nocs")
    a("s_cmp_eq_u32 s36, 0"); a(f"s_cbranch_scc0 L_{name}_end")
    a(f"v_lshl_add_u32 v{T}, v{HI}, 3, v{QOFF}"); a(f"v_add_u32 v{T}, {WS_O:#x}, v{T}")
    for b,(O,Lr) in enumerate(((OA,LA),(OB,LB))):
        a(f"v_rcp_f32 v{Lr}, v{Lr}"); a("s_nop 0")
        for r in range(12): a(f"v_mul_f32 v{O+r}, v{O+r}, v{Lr}")
        for q in range(3):
            a(f"v_cvt_pk_bf16_f32 v{SA+b*8+2*q}, v{O+4*q}, v{O+4*q+1}"); a(f"v_cvt_pk_bf16_f32 v{SA+b*8+2*q+1}, v{O+4*q+2}, v{O+4*q+3}")
        for q in range(2): a(f"buffer_store_dwordx2 v[{SA+b*8+2*q}:{SA+b*8+2*q+1}], v{T}, s[8:11], 0 offen offset:{40*b+16*q}")
    a(f"v_cmp_eq_u32 vcc, 0, v{HI}"); a("s_and_saveexec_b64 s[46:47], vcc")
    for b in range(2): a(f"buffer_store_dwordx2 v[{SA+b*8+4}:{SA+b*8+5}], v{T}, s[8:11], 0 offen offset:{40*b+32}")
    a(f"s_branch L_{name}_end")
    a.lab("L_k2_fallback")
    a("s_mov_b32 s60, 1")
    for f1 in (QA1,QB1):
        a(f"v_mov_b32 v{f1+2}, 0"); a(f"v_mov_b32 v{f1+3}, 0")
    a(f"v_mov_b32 v{T+8}, 0xff800000"); a(f"v_mov_b32 v{T+9}, 0xff800000")
    a("s_lshl_b32 s44, s36, 16"); a("s_add_u32 s45, s44, 65536")
    a.lab("L_k2_mx")
    a(f"buffer_load_dwordx4 v[{KS[0]}:{KS[0]+3}], v{VD}, s[4:7], s44 offen"); a(f"buffer_load_dwordx4 v[{KS[0]+4}:{KS[0]+7}], v{VD}, s[4:7], s44 offen offset:1024")
    a("s_waitcnt vmcnt(0)")
    qk(SA,QA0,QA1,0,0); qk(SA,QA0,QA1,0,1); qk(SB,QB0,QB1,0,0); qk(SB,QB0,QB1,0,1); a("s_nop 7"); a("s_nop 7")
    for S,M in ((SA,T+8),(SB,T+9)):
        for i in range(0,16,2): a(f"v_max3_f32 v{M}, v{S+i}, v{S+i+1}, v{M}")
    a("s_add_u32 s44, s44, 2048"); a("s_cmp_lt_u32 s44, s45"); a("s_cbranch_scc1 L_k2_mx")
    for M in (T+8,T+9):
        a(f"v_mov_b32 v{T+4}, v{M}"); a("s_nop 1"); a(f"v_permlane32_swap_b32 v{M}, v{T+4}"); a(f"v_max_f32 v{M}, v{M}, v{T+4}")
    a("s_lshl_b32 s44, s32, 9"); a(f"s_add_u32 s44, s44, {MXL}"); a(f"v_lshlrev_b32 v{T+4}, 2, v1"); a(f"v_add_u32 v{T+5}, s44, v{T+4}")
    a(f"ds_write_b32 v{T+5}, v{T+8}"); a(f"ds_write_b32 v{T+5}, v{T+9} offset:256"); a("s_waitcnt lgkmcnt(0)"); a("s_barrier")
    a("s_xor_b32 s45, s32, 4"); a("s_lshl_b32 s45, s45, 9"); a(f"s_add_u32 s45, s45, {MXL}"); a(f"v_add_u32 v{T+5}, s45, v{T+4}")
    a(f"ds_read_b32 v{T+6}, v{T+5}"); a(f"ds_read_b32 v{T+7}, v{T+5} offset:256"); a("s_waitcnt lgkmcnt(0)")
    a(f"v_max_f32 v{T+8}, v{T+8}, v{T+6}"); a(f"v_max_f32 v{T+9}, v{T+9}, v{T+7}")
    setm(QA1,T+8); setm(QB1,T+9)
    dma(0); dma(1)
    a("s_branch L_k2_main")
    tail(a,name,256)
    return a.text(), 131072+256+8*512

def proj(name,K,pitchA,xptr,xoff,xbytes,wptr,resptr,resoff,outptr,outoff,stats):
    a=A(); head(a,name,256); tile_map_32x8(a)
    srd(a,4,xptr,xoff,xbytes); srd(a,8,wptr,0,K*1280)
    srd(a,20,outptr,outoff,ACT_BYTES); srd(a,24,resptr,resoff,ACT_BYTES)
    if stats: srd(a,28,PWS,WS_ST,2048*64)
    a("s_mul_i32 s34, s51, 160")
    g=Gemm(a,64,K,pitchA,[(10,1280,5)],NS=8,PD=2,free='prev')
    nv=g.prologue(2); nv=(nv+3)//4*4
    ACC=nv; nv+=20; RES=nv; nv+=10; TOK=nv; OFF=nv+1; G=nv+2; nv+=4; nv=(nv+3)//4*4
    a(f"v_and_b32 v{TOK}, 15, v1"); a("s_lshl_b32 s36, s32, 4"); a("s_add_u32 s36, s36, s33"); a(f"v_add_u32 v{TOK}, s36, v{TOK}")
    a(f"v_lshrrev_b32 v{G}, 4, v1"); a(f"v_mul_u32_u24 v{OFF}, 1280, v{TOK}"); a(f"v_lshl_add_u32 v{OFF}, v{G}, 3, v{OFF}"); a(f"v_add_u32 v{OFF}, s34, v{OFF}")
    def ad():
        for j in range(5): a(f"buffer_load_dwordx2 v[{RES+2*j}:{RES+2*j+1}], v{OFF}, s[24:27], 0 offen offset:{32*j}")
    g.after_dma=ad
    g.main(nv,lambda tb,j:f"v[{ACC+4*j}:{ACC+4*j+3}]")
    T=(g.nfr+3)//4*4
    a("s_nop 7"); a("s_waitcnt vmcnt(0)")
    for j in range(5):
        for h in range(2):
            a(f"v_lshlrev_b32 v{T}, 16, v{RES+2*j+h}"); a(f"v_and_b32 v{T+1}, 0xffff0000, v{RES+2*j+h}")
            a(f"v_add_f32 v{ACC+4*j+2*h}, v{ACC+4*j+2*h}, v{T}"); a(f"v_add_f32 v{ACC+4*j+2*h+1}, v{ACC+4*j+2*h+1}, v{T+1}")
            a(f"v_cvt_pk_bf16_f32 v{RES+2*j+h}, v{ACC+4*j+2*h}, v{ACC+4*j+2*h+1}")
        a(f"buffer_store_dwordx2 v[{RES+2*j}:{RES+2*j+1}], v{OFF}, s[20:23], 0 offen offset:{32*j}")
    if stats:
        for j in range(5):
            for h in range(2):
                a(f"v_lshlrev_b32 v{ACC+4*j+2*h}, 16, v{RES+2*j+h}"); a(f"v_and_b32 v{ACC+4*j+2*h+1}, 0xffff0000, v{RES+2*j+h}")
        def red(r):
            a(f"ds_swizzle_b32 v{T+3}, v{r} offset:0x401F"); a("s_waitcnt lgkmcnt(0)"); a(f"v_add_f32 v{r}, v{r}, v{T+3}")
            a(f"v_mov_b32 v{T+3}, v{r}"); a("s_nop 1"); a(f"v_permlane32_swap_b32 v{r}, v{T+3}"); a(f"v_add_f32 v{r}, v{r}, v{T+3}")
        a(f"v_add_f32 v{T}, v{ACC}, v{ACC+1}")
        for i in range(2,20): a(f"v_add_f32 v{T}, v{T}, v{ACC+i}")
        red(T)
        a(f"v_mul_f32 v{T+2}, {F(1/80):#x}, v{T}")
        for i in range(20):
            a(f"v_sub_f32 v{ACC+i}, v{ACC+i}, v{T+2}")
            a(f"v_mul_f32 v{T+1}, v{ACC}, v{ACC}" if i==0 else f"v_fmac_f32 v{T+1}, v{ACC+i}, v{ACC+i}")
        red(T+1)
        a(f"v_lshlrev_b32 v{T+2}, 6, v{TOK}"); a("s_lshl_b32 s36, s51, 3"); a(f"v_add_u32 v{T+2}, s36, v{T+2}")
        a(f"v_cmp_eq_u32 vcc, 0, v{G}"); a("s_and_saveexec_b64 s[40:41], vcc")
        a(f"buffer_store_dwordx2 v[{T}:{T+1}], v{T+2}, s[28:31], 0 offen")
    tail(a,name,T+8)
    return a.text(), g.lds
def k3(): return proj("k3_kernel",640,1280,PWS,WS_O,ACT_BYTES,PWO,PX,0,PWS,WS_H,True)
def k5(): return proj("k5_kernel",1728,3456,PWS,WS_HH,2048*3456,PWD,PWS,WS_H,POUT,0,False)
def k4():
    a=A(); name="k4_kernel"; head(a,name,256)
    a("s_and_b32 s36, s2, 7"); a("s_lshr_b32 s37, s2, 3")
    a("s_and_b32 s38, s36, 1"); a("s_lshl_b32 s38, s38, 3"); a("s_and_b32 s39, s37, 7"); a("s_add_u32 s38, s38, s39"); a("s_lshl_b32 s33, s38, 7")
    a("s_lshr_b32 s36, s36, 1"); a("s_lshl_b32 s36, s36, 2"); a("s_lshr_b32 s37, s37, 3"); a("s_add_u32 s51, s36, s37")
    srd(a,4,PWS,WS_H,ACT_BYTES); srd(a,8,PWG,0,640*3456); srd(a,12,PWU,0,640*3456)
    srd(a,20,PWS,WS_HH,2048*3456); srd(a,24,PWS,WS_ST,2048*64); srd(a,28,PWS,WS_CS,3456*4)
    a("s_mul_i32 s34, s51, 224"); a("s_mov_b32 s35, s34")
    g=Gemm(a,128,640,1280,[(14,3456,7),(14,3456,7)],NS=3,PD=1,free='cur',jb=4)
    ST=200
    TOK=[2,3]; G=4; MEAN=[5,6]; RS2=[7,8]
    a(f"v_and_b32 v{TOK[0]}, 15, v1"); a("s_lshl_b32 s36, s32, 5"); a("s_add_u32 s36, s36, s33"); a(f"v_add_u32 v{TOK[0]}, s36, v{TOK[0]}")
    a(f"v_add_u32 v{TOK[1]}, 16, v{TOK[0]}"); a(f"v_lshrrev_b32 v{G}, 4, v1")
    for tb in range(2):
        a(f"v_lshlrev_b32 v9, 6, v{TOK[tb]}")
        for q in range(4): a(f"buffer_load_dwordx4 v[{ST+16*tb+4*q}:{ST+16*tb+4*q+3}], v9, s[24:27], 0 offen offset:{16*q}")
    a(f"s_mul_i32 s36, s51, 448"); a(f"v_lshl_add_u32 v9, v{G}, 4, s36")
    for ri in range(2):
        a(f"s_mov_b32 s37, {ri*1728*4}")
        for j in range(7): a(f"buffer_load_dwordx4 a[{28*ri+4*j}:{28*ri+4*j+3}], v9, s[28:31], s37 offen offset:{64*j}")
    nv=g.prologue(10); nv=(nv+3)//4*4
    ACC=nv; nv+=112
    def ad():
        a("s_waitcnt vmcnt(47)")
        for tb in range(2):
            b=ST+16*tb; T=232
            a(f"v_add_f32 v{T}, v{b}, v{b+2}")
            for i in range(2,8): a(f"v_add_f32 v{T}, v{T}, v{b+2*i}")
            a(f"v_mul_f32 v{MEAN[tb]}, {F(1/640):#x}, v{T}")
            a(f"v_add_f32 v{T+1}, v{b+1}, v{b+3}")
            for i in range(2,8): a(f"v_add_f32 v{T+1}, v{T+1}, v{b+2*i+1}")
            a(f"v_mov_b32 v{T+3}, {F(1/80):#x}"); a(f"v_mov_b32 v{T+4}, {F(80.0):#x}")
            for i in range(8):
                a(f"v_fma_f32 v{T+2}, v{b+2*i}, v{T+3}, -v{MEAN[tb]}"); a(f"v_mul_f32 v{T+2}, v{T+2}, v{T+2}"); a(f"v_fmac_f32 v{T+1}, v{T+2}, v{T+4}")
            a(f"v_mul_f32 v{T+1}, {F(1/640):#x}, v{T+1}"); a(f"v_add_f32 v{T+1}, {F(1e-5):#x}, v{T+1}")
            a(f"v_rcp_f32 v{RS2[tb]}, v{T+1}")
    g.after_dma=ad
    g.main(nv,lambda tb,j:f"v[{ACC+(tb*14+j)*4}:{ACC+(tb*14+j)*4+3}]")
    assert g.nfr<=232 and nv<=ST, (g.nfr,nv)
    T=nv; OFF=[T,T+1]; C=T+4
    a("s_nop 7")
    for tb in range(2):
        a(f"v_mul_u32_u24 v{OFF[tb]}, 3456, v{TOK[tb]}"); a(f"v_lshl_add_u32 v{OFF[tb]}, v{G}, 3, v{OFF[tb]}"); a(f"v_add_u32 v{OFF[tb]}, s34, v{OFF[tb]}")
    for j in range(7):
        if j==3: a("s_cmp_eq_u32 s51, 15"); a(f"s_cbranch_scc1 L_{name}_end")
        for r in range(4): a(f"v_accvgpr_read_b32 v{C+r}, a{4*j+r}"); a(f"v_accvgpr_read_b32 v{C+4+r}, a{28+4*j+r}")
        for tb in range(2):
            ag=ACC+(tb*14+j)*4; au=ACC+(tb*14+7+j)*4
            for r in range(4):
                a(f"v_fma_f32 v{ag+r}, -v{MEAN[tb]}, v{C+r}, v{ag+r}"); a(f"v_fma_f32 v{au+r}, -v{MEAN[tb]}, v{C+4+r}, v{au+r}")
            for r in range(4):
                a(f"v_mul_f32 v{ag+r}, v{ag+r}, v{au+r}")
            for r in range(4): a(f"v_mul_f32 v{ag+r}, v{ag+r}, v{RS2[tb]}")
            cvt_store8(a,ag,ag+1,ag+2,ag+3,au,OFF[tb],20,imm=32*j)
    tail(a,name,256,nacc=56)
    return a.text(), g.lds
def build(kernels):
    hdr=open("cdna_kernels/"+NAME+".s.ref").read().split("; Override launch")[0]
    body=""; lines=""
    for fn,grid,blk in kernels:
        t,lds=fn(); nm=fn.__name__+"_kernel"
        lines+=f"; @launch kernel={nm} grid=({grid},1,1) block=({blk},1,1) lds={lds}\n"
        body+=t+"\n"
    return hdr+lines+'.amdgcn_target "amdgcn-amd-amdhsa--gfx950"\n.text\n'+body
if __name__=="__main__":
    ks=[(k1,256,256)]
    for nm,gr,bl in (("k2",256,512),("k3",256,256),("k4",256,256),("k5",256,256)):
        if nm in globals(): ks.append((globals()[nm],gr,bl))
    out=sys.argv[1] if len(sys.argv)>1 else "cdna_kernels/"+NAME+".s"
    open(out,"w").write(build(ks))
```

```python
import sys
import os
PROF=bool(os.environ.get("PROF"))
MARKS=(96,97,98,99)
def mark(a,i):
    if PROF: a(f"s_memtime s[100:101]"); a("s_waitcnt lgkmcnt(0)"); a(f"s_mov_b32 s{96+i}, s100")
NAME="sequential_preLN__grouped_kv_mqa__glu_gated_bilinear__prompt"
WS_Q=0x000000; WS_KF=0x300000; WS_VF=0x340000; WS_KM=0x380000; WS_CS=0x390000
WS_O=0x400000; WS_H=0x700000; WS_ST=0xA00000; WS_HH=0xB00000
ACT_BYTES=2048*640*2
class A:
    def __init__(s): s.L=[]; s.n=0
    def __call__(s,x): s.L.append("    "+x)
    def lab(s,x): s.L.append(x+":")
    cnt=0
    def uniq(s,p): A.cnt+=1; return f"L_{p}_{A.cnt}"
    def text(s): return "\n".join(s.L)+"\n"
def srd(a,d,slot,off,nbytes,tmp=None):
    if off:
        a(f"s_add_u32 s{d}, s{slot}, {off:#x}"); a(f"s_addc_u32 s{d+1}, s{slot+1}, 0")
    else:
        a(f"s_mov_b32 s{d}, s{slot}"); a(f"s_mov_b32 s{d+1}, s{slot+1}")
    a(f"s_mov_b32 s{d+2}, {nbytes:#x}"); a(f"s_mov_b32 s{d+3}, 0x20000")
def head(a,name,nwg):
    a.L.append(f".globl {name}\n.p2align 8\n.type {name},@function\n{name}:")
    a(f"s_cmp_ge_u32 s2, {nwg}"); a(f"s_cbranch_scc1 L_{name}_end")
    a("s_load_dwordx16 s[64:79], s[0:1], 0"); a("s_load_dwordx8 s[80:87], s[0:1], 64")
    if PROF: a("s_memtime s[88:89]"); a("s_memrealtime s[90:91]")
    a("v_and_b32 v1, 63, v0"); a("v_lshrrev_b32 v2, 6, v0"); a("s_nop 0"); a("v_readfirstlane_b32 s32, v2"); a("s_nop 3"); a("s_mov_b32 s53, s32")
    a("s_waitcnt lgkmcnt(0)")
    mark(a,0)
def tail(a,name,nv,nacc=0,ns=102):
    a.lab(f"L_{name}_end")
    if PROF:
        kidx=int(name[1])
        a("s_mov_b64 exec, -1"); a("s_waitcnt vmcnt(0) lgkmcnt(0)")
        a(f"s_cmp_ge_u32 s2, 256"); a(f"s_cbranch_scc1 L_{name}_e2")
        a("s_memtime s[92:93]"); a("s_memrealtime s[94:95]"); a("s_waitcnt lgkmcnt(0)")
        for i,(r) in enumerate((88,90,92,94)+tuple(MARKS)): a(f"v_mov_b32 v{4+i}, s{r}")
        a(f"s_lshl_b32 s88, s2, 3"); a("s_add_u32 s88, s88, s53"); a("s_lshl_b32 s88, s88, 5"); a(f"s_add_u32 s88, s88, {0x1A00000+kidx*0x10000:#x}")
        a("v_mov_b32 v2, s88"); srd(a,4,PWS,0,0x2000000)
        a("v_cmp_eq_u32 vcc, 0, v1"); a("s_and_saveexec_b64 s[40:41], vcc")
        a("buffer_store_dwordx4 v[4:7], v2, s[4:7], 0 offen"); a("buffer_store_dwordx4 v[8:11], v2, s[4:7], 0 offen offset:16")
        a.lab(f"L_{name}_e2")
    a("s_endpgm")
    acc=(nv+3)//4*4
    a.L.append(f""".section .rodata,"a"
.p2align 6
.amdhsa_kernel {name}
  .amdhsa_next_free_vgpr {acc+nacc if nacc else nv}
  .amdhsa_next_free_sgpr {ns}
  .amdhsa_accum_offset {acc}
  .amdhsa_group_segment_fixed_size 0
  .amdhsa_kernarg_size 96
  .amdhsa_user_sgpr_count 2
  .amdhsa_user_sgpr_kernarg_segment_ptr 1
  .amdhsa_system_sgpr_workgroup_id_x 1
.end_amdhsa_kernel
.text""")
SC=os.environ.get('SC',''); SC4=os.environ.get('SC4','')
PACK=True
WS_PO=0x1200000; WS_PD=0x1300000; WS_PG=0x1520000; WS_PU=0x1750000
ROT=lambda x: x if os.environ.get("ROT") else (0,0)
BS={"k1_kernel":int(os.environ.get("B1",1)),"k3_kernel":int(os.environ.get("B3",1)),"k5_kernel":int(os.environ.get("B5",1))}
DEPTH={"k1_kernel":int(os.environ.get("D1",4)),"k3_kernel":int(os.environ.get("D3",4)),"k5_kernel":int(os.environ.get("D5",4)),"k4_kernel":int(os.environ.get("D4",3))}
PX,PWQ,PWK,PWV,PWO,PWG,PWU,PWD,POUT,PWS=64,66,68,70,72,76,78,80,82,86
def magic(n,maxq):
    m=(65536+n-1)//n
    assert all((q*m)>>16==q//n for q in range(maxq)),n
    return m
class Gemm:
    def __init__(g,a,BM,K,pitchA,regions,NS,PD,free,extra=None,accbase=None,jb=4,PX=0):
        g.PX=PX
        g.a=a;g.BM=BM;g.K=K;g.pitchA=pitchA;g.regions=regions;g.NS=NS;g.PD=PD;g.free=free;g.jb=jb;g.bs=1
        g.TB=BM//64; g.nst=K//64; g.extra=extra or []
        g.tiles=[]
        for ri,(nc,pw,nt) in enumerate(regions):
            for t in range(nt): g.tiles.append((ri,t))
        g.NT=len(g.tiles)
        g.roff=[]; o=BM*128 if not PX else 0
        for (nc,pw,nt) in regions: g.roff.append(o); o+=64*nc*16
        g.ssz=o
        assert g.ssz*NS<=160*1024-64, g.ssz*NS
        g.lds=g.ssz*NS
    def slots(g):
        sl=[]
        nA=g.BM//8 if not g.PX else 0
        for j in range(nA//4): sl.append([('A',4*j+w) for w in range(4)])
        left=[]
        for ri,(nc,pw,nt) in enumerate(g.regions):
            for j in range(nc//4): sl.append([(ri,4*j+w) for w in range(4)])
            left+= [(ri,i) for i in range(nc//4*4,nc)]
        assert len(left)<=4
        if left: sl.append(left+[None]*(4-len(left)))
        return sl
    def prologue(g,v0):
        a=g.a; sl=g.slots(); g.sl=sl; g.voff=[v0+i for i in range(len(sl))]
        nv=v0+len(sl)
        T1,T2,T3=nv+20,nv+21,nv+22
        g.pmax=T3+1
        for j,s in enumerate(sl):
            kinds=set(x[0] for x in s if x)
            v=g.voff[j]
            if kinds=={'A'}:
                a(f"s_lshl_b32 s36, s32, 3"); a(f"s_add_u32 s36, s36, {32*j}")
                a(f"v_lshrrev_b32 v{T1}, 3, v1"); a(f"v_add_u32 v{T1}, s36, v{T1}")
                a(f"v_lshrrev_b32 v{T2}, 1, v{T1}"); a(f"v_xor_b32 v{T2}, v{T2}, v1"); a(f"v_and_b32 v{T2}, 7, v{T2}")
                a(f"v_add_u32 v{T1}, s33, v{T1}"); a(f"s_mov_b32 s36, {g.pitchA}")
                a(f"v_mul_lo_u32 v{T1}, v{T1}, s36"); a(f"v_lshl_add_u32 v{v}, v{T2}, 4, v{T1}")
            else:
                first=True
                for w,x in enumerate(s):
                    if x is None: continue
                    ri,i=x; nc,pw,nt=g.regions[ri]
                    vals=(i*64,magic(nc,nc*64),nc,pw)
                    if first:
                        for r,val in zip((37,38,39,41),vals): a(f"s_mov_b32 s{r}, {val}")
                        a(f"s_mov_b32 s42, s{34+ri}"); first=False; prev=(vals,ri)
                    elif (vals,ri)!=prev:
                        a(f"s_cmp_ge_u32 s32, {w}")
                        for r,val,pv in zip((37,38,39,41),vals,prev[0]):
                            if val!=pv: a(f"s_cselect_b32 s{r}, {val}, s{r}")
                        if ri!=prev[1]: a(f"s_cselect_b32 s42, s{34+ri}, s42")
                        prev=(vals,ri)
                a(f"v_add_u32 v{T1}, s37, v1")
                a(f"v_mul_lo_u32 v{T2}, v{T1}, s38"); a(f"v_lshrrev_b32 v{T2}, 16, v{T2}")
                a(f"v_mul_lo_u32 v{T3}, v{T2}, s39"); a(f"v_sub_u32 v{T1}, v{T1}, v{T3}")
                lo,msk=(8,0xe7) if g.PX else (4,0xf3)
                a(f"v_and_b32 v{T3}, {lo}, v{T2}"); a(f"v_lshlrev_b32 v{T3}, 1, v{T3}")
                a(f"v_and_b32 v{v}, {2*lo}, v{T2}"); a(f"v_lshrrev_b32 v{v}, 1, v{v}"); a(f"v_or_b32 v{T3}, v{T3}, v{v}")
                a(f"v_and_b32 v{T2}, {msk:#x}, v{T2}"); a(f"v_or_b32 v{T2}, v{T2}, v{T3}")
                a(f"v_mul_lo_u32 v{T2}, v{T2}, s41"); a(f"v_lshl_add_u32 v{T2}, v{T1}, 4, v{T2}")
                a(f"v_add_u32 v{v}, s42, v{T2}")
        last=sl[-1]; g.hasleft=any(x is None for x in last) or len(set(x[0] for x in last if x))>1
        if g.hasleft:
            regs=[x for x in last]
            r0=regs[0][0]
            for q in range(4): a(f"s_mov_b32 s{16+q}, s{8+4*r0+q}")
            a(f"s_mov_b32 s44, {g.roff[r0]+regs[0][1]*1024}"); a(f"s_mov_b32 s45, {64*g.regions[r0][1]}")
            for w in range(1,4):
                if regs[w] is None: continue
                ri,i=regs[w]
                a(f"s_cmp_ge_u32 s32, {w}")
                if ri!=r0:
                    for q in range(3): a(f"s_cselect_b32 s{16+q}, s{8+4*ri+q}, s{16+q}")
                    a(f"s_cselect_b32 s45, {64*g.regions[ri][1]}, s45")
                a(f"s_cselect_b32 s44, {g.roff[ri]+i*1024}, s44")
            g.nleft=sum(1 for x in last if x)
        a("s_lshl_b32 s46, s32, 10")
    def producer(g,name,D):
        a=g.a
        a.lab(f"L_{name}_prod"); a("s_and_b32 s32, s32, 3")
        if os.environ.get("PRIO"): a("s_setprio 3")
        ra,rb=g.rot
        a(f"s_mul_i32 s54, s55, {ra}"); a(f"s_mul_i32 s57, s56, {rb}"); a("s_add_u32 s54, s54, s57")
        a(f"s_sub_u32 s57, s54, {g.nst}"); a(f"s_cmp_ge_u32 s54, {g.nst}"); a("s_cselect_b32 s54, s57, s54")
        a("s_mov_b32 s45, 0")
        g.prologue(2)
        mark(a,1)
        classes=[True]
        if g.hasleft and g.nleft<4:
            classes=[True,False]; a(f"s_cmp_ge_u32 s32, {g.nleft}"); a(f"s_cbranch_scc1 L_{name}_prod1")
        for cls in classes:
            if not cls: a.lab(f"L_{name}_prod1")
            issued=[]
            def upto(lim):
                while len(issued)<min(lim,g.nst): issued.append(g.dma(len(issued),cls))
            def tick(acc):
                if PROF:
                    a("s_memtime s[100:101]"); a("s_waitcnt lgkmcnt(0)"); a("s_sub_u32 s58, s100, s59"); a("s_mov_b32 s59, s100")
                    if acc is not None: a(f"s_add_u32 s{acc}, s{acc}, s58")
            if PROF:
                for r in (97,98,99): a(f"s_mov_b32 s{r}, s88")
            tick(None)
            upto(D)
            tick(99)
            bs=g.bs
            for st in range(0,g.nst,bs):
                last=min(st+bs-1,g.nst-1)
                assert len(issued)>last
                a(f"s_waitcnt vmcnt({min(63,sum(issued[last+1:]))})"); tick(97); a("s_barrier"); tick(98)
                lim=max(g.NS,(st-1+g.NS if g.free=='cur' else st-2+g.NS)+1)
                upto(min(lim,len(issued)+bs)); tick(99)
            a(f"s_branch L_{name}_end")
    def rdaddr(g,nv):
        a=g.a
        T1,T2,T3=nv+20,nv+21,nv+22
        g.nwin=(g.lds+65535)//65536
        g.vx=[[nv+ks*3+w for w in range(3)] for ks in range(2)]; nv+=6
        g.vw=[[nv+ri*3+w for w in range(3)] for ri in range(len(g.regions))]; nv+=6
        if g.PX:
            fs=g.nst*2*1024
            a(f"s_lshr_b32 s36, s33, 4"); a(f"s_mul_i32 s37, s32, {g.TB}"); a("s_add_u32 s36, s36, s37"); a(f"s_mul_i32 s36, s36, {fs}")
            a(f"v_lshlrev_b32 v{T1}, 4, v1"); a(f"v_add_u32 v{g.vx[0][0]}, s36, v{T1}"); a(f"v_add_u32 v{g.vx[0][1]}, {fs}, v{g.vx[0][0]}")
        else:
            a(f"v_and_b32 v{T1}, 15, v1"); a(f"v_lshrrev_b32 v{T2}, 4, v1"); a(f"v_lshrrev_b32 v{T3}, 1, v{T1}")
            a(f"v_xor_b32 v{T2}, v{T2}, v{T3}"); a(f"v_lshlrev_b32 v{T2}, 4, v{T2}")
            a(f"s_mul_i32 s36, s32, {g.TB*16*128}"); a(f"v_lshl_add_u32 v{T2}, v{T1}, 7, v{T2}"); a(f"v_add_u32 v{g.vx[0][0]}, s36, v{T2}")
            a(f"v_xor_b32 v{g.vx[1][0]}, 64, v{g.vx[0][0]}")
            for ks in range(2):
                for w in range(1,3): a(f"v_add_u32 v{g.vx[ks][w]}, {65536*w}, v{g.vx[ks][0]}")
        a(f"v_lshrrev_b32 v{T1}, 5, v1"); a(f"v_lshlrev_b32 v{T1}, 4, v{T1}")
        a(f"v_bfe_u32 v{T2}, v1, 4, 1"); a(f"v_lshl_add_u32 v{T1}, v{T2}, 2, v{T1}")
        a(f"v_bfe_u32 v{T2}, v1, 2, 2"); a(f"v_add_u32 v{T1}, v{T1}, v{T2}")
        for ri,(nc,pw,nt) in enumerate(g.regions):
            a(f"v_mul_u32_u24 v{T2}, {nc*16}, v{T1}")
            a(f"v_and_b32 v{T3}, {3 if nc>1 else 1}, v1"); a(f"v_lshl_add_u32 v{g.vw[ri][0]}, v{T3}, 3, v{T2}")
            if os.environ.get("EXP"): a(f"v_lshlrev_b32 v{g.vw[ri][0]}, 4, v1")
            for w in range(1,3): a(f"v_add_u32 v{g.vw[ri][w]}, {65536*w}, v{g.vw[ri][0]}")
        return nv
    def dma(g,st,cls):
        a=g.a; base=(st%g.NS)*g.ssz; n=0
        a("s_lshl_b32 s47, s54, 7")
        for ri,(nc,pw,nt) in enumerate(g.regions): a(f"s_mul_i32 s{48+ri}, s54, {64*pw}")
        a("s_mul_i32 s50, s45, s54")
        a("s_add_u32 s54, s54, 1"); a(f"s_cmp_eq_u32 s54, {g.nst}"); a("s_cselect_b32 s54, 0, s54")
        for j,s in enumerate(g.sl):
            v=g.voff[j]
            if j==len(g.sl)-1 and g.hasleft:
                if not cls: continue
                a(f"s_add_u32 m0, s44, {base}"); a("s_nop 0")
                a(f"buffer_load_dwordx4 v{v}, s[16:19], s50 offen lds"); n+=1
            else:
                k,i=s[0]
                if k=='A': off=i*1024; sr=4; so=47
                else: off=g.roff[k]+i*1024; sr=8+4*k; so=48+k
                a(f"s_add_u32 m0, s46, {base+off}"); a("s_nop 0")
                a(f"buffer_load_dwordx4 v{v}, s[{sr}:{sr+3}], s{so} offen lds"); n+=1
        return n
    def ldsaddr(g,regs,off):
        return f"v{regs[off>>16]} offset:{off&65535}"
    def main(g,fr0,acc):
        a=g.a; NT=g.NT;TB=g.TB;PD=g.PD; nsteps=g.nst*2
        setsz=NT*4
        def wf(i,j): b=fr0+(i%PD)*setsz+j*4; return b
        NX=(g.PX+1) if g.PX else (PD+1)
        def xf(i,tb): b=fr0+PD*setsz+(i%NX)*TB*4+tb*4; return b
        g.nfr=fr0+PD*setsz+NX*TB*4
        def ld_x(i):
            a(f"s_mov_b32 s47, {i*1024}")
            for tb in range(TB): a(f"buffer_load_dwordx4 v[{xf(i,tb)}:{xf(i,tb)+3}], v{g.vx[0][tb]}, s[4:7], s47 offen")
        q=[]
        nt_=lambda ri: g.regions[ri][2]
        def rd_w(i,j):
            st,ks=divmod(i,2); ri,t=g.tiles[j]; nc=g.regions[ri][0]; base=(st%g.NS)*g.ssz+g.roff[ri]
            if os.environ.get("EXP"):
                a(f"ds_read_b128 v[{wf(i,j)}:{wf(i,j)+3}], {g.ldsaddr(g.vw[ri],base+(ks*nt_(ri)+t)*1024)}"); q.append((i,'w',j)); return
            for h in range(2):
                off=base+(32*ks+8*h)*nc*16+t*32
                a(f"ds_read_b64_tr_b16 v[{wf(i,j)+2*h}:{wf(i,j)+2*h+1}], {g.ldsaddr(g.vw[ri],off)}"); q.append((i,'w',j))
        def rd_x(i):
            st,ks=divmod(i,2); base=(st%g.NS)*g.ssz
            if g.PX: return
            for tb in range(TB):
                a(f"ds_read_b128 v[{xf(i,tb)}:{xf(i,tb)+3}], {g.ldsaddr(g.vx[ks],base+tb*2048)}"); q.append((i,'x',tb))
        def need(tags):
            idx=max([n for n,t in enumerate(q) if t in tags],default=-1)
            if idx>=0:
                rem=len(q)-1-idx
                a(f"s_waitcnt lgkmcnt({min(rem,15)})")
                if rem<=15: del q[:idx+1]
                else: del q[:len(q)-15]
        def sync(st):
            if g.free=='cur': a(f"s_waitcnt lgkmcnt(0)"); q.clear()
            a("s_barrier")
        mark(a,1)
        g.after_dma()
        for i in range(min(g.PX,nsteps)): ld_x(i)
        mark(a,2)
        synced=set()
        def ensure(i):
            st=i//2
            if st not in synced:
                if st%g.bs==0: sync(st)
                synced.add(st)
        for i in range(PD):
            ensure(i); rd_x(i)
            for j in range(NT): rd_w(i,j)
        for i in range(nsteps):
            nx=i+PD; defer=[]; xdone=False
            newst = nx<nsteps and (nx//2) not in synced
            if g.PX:
                a(f"s_waitcnt vmcnt({(min(nsteps,i+g.PX)-(i+1))*TB})")
                if i+g.PX<nsteps: ld_x(i+g.PX)
            for j in range(NT):
                need({(i,'w',j)}|{(i,'x',tb) for tb in range(TB)})
                for tb in range(TB):
                    c=acc(tb,j); src=c if i>0 else "0"
                    a(f"v_mfma_f32_16x16x32_bf16 {c}, v[{wf(i,j)}:{wf(i,j)+3}], v[{xf(i,tb)}:{xf(i,tb)+3}], {src}")
                for e in g.extra: e(i,j,wf(i,j),[xf(i,tb) for tb in range(TB)])
                if nx<nsteps:
                    if newst and g.free=='cur' and j<g.jb: defer.append(j); continue
                    if newst and (nx//2) not in synced:
                        ensure(nx)
                        for d in defer: rd_w(nx,d)
                        defer=[]
                    if not xdone: rd_x(nx); xdone=True
                    rd_w(nx,j)
        mark(a,3)
    def after_dma(g): pass

F=lambda x: __import__("struct").unpack("<I",__import__("struct").pack("<f",x))[0]
import math
def tile_map_32x8(a):
    a("s_and_b32 s36, s2, 7"); a("s_lshr_b32 s37, s2, 3"); a("s_and_b32 s38, s37, 3")
    a("s_lshl_b32 s36, s36, 2"); a("s_add_u32 s36, s36, s38"); a("s_lshl_b32 s33, s36, 6"); a("s_lshr_b32 s51, s37, 2")
    a("s_mov_b32 s52, s36")
    a("s_mov_b32 s55, s51"); a("s_mov_b32 s56, s38")
def cvt_store8(a,v0,v1,v2,v3,t0,off,srd_,imm=0):
    a(f"v_cvt_pk_bf16_f32 v{t0}, v{v0}, v{v1}"); a(f"v_cvt_pk_bf16_f32 v{t0+1}, v{v2}, v{v3}")
    a(f"buffer_store_dwordx2 v[{t0}:{t0+1}], v{off}, s[{srd_}:{srd_+3}], 0 offen offset:{imm}")
def k1():
    a=A(); name="k1_kernel"; head(a,name,256); tile_map_32x8(a)
    srd(a,4,PX,0,ACT_BYTES); srd(a,8,PWQ,0,640*1280)
    a("s_cmp_lt_u32 s51, 4"); a(f"s_cselect_b32 s12, s{PWK}, s{PWV}"); a(f"s_cselect_b32 s13, s{PWK+1}, s{PWV+1}")
    a("s_mov_b32 s14, 25600"); a("s_mov_b32 s15, 0x20000")
    srd(a,20,PWS,0,0x400000)
    a("s_mul_i32 s34, s51, 160"); a("s_and_b32 s35, s51, 3"); a("s_lshl_b32 s35, s35, 3")
    g=Gemm(a,64,640,1280,[(10,1280,5),(1,40,1)],NS=8,PD=2,free='prev'); g.rot=(1,3); g.bs=BS[name]
    a("s_cmp_ge_u32 s32, 4"); a(f"s_cbranch_scc1 L_{name}_prod")
    nv=g.rdaddr(2)
    ONES=nv; nv+=4; nv=(nv+3)//4*4; ONES=nv-4 if False else nv; nv+=4
    for r in range(4): a(f"v_mov_b32 v{ONES+r}, 0x3f803f80")
    ACC=nv; nv+=24; CS=nv; nv+=24; SM=nv; nv+=4; SQ=nv; nv+=4
    KMO=g.lds
    a(f"v_mov_b32 v{nv}, 0"); a(f"v_lshlrev_b32 v{nv+1}, 2, v1"); a(f"ds_write_b32 v{nv+1}, v{nv} offset:0")
    a.L=a.L[:-3]
    a(f"v_mov_b32 v{nv}, 0"); a(f"v_lshlrev_b32 v{nv+1}, 2, v1"); a(f"v_add_u32 v{nv+1}, {KMO}, v{nv+1}"); a(f"ds_write_b32 v{nv+1}, v{nv}")
    def ex(i,j,w,x):
        src=lambda b: f"v[{b}:{b+3}]" if i>0 else "0"
        a(f"v_mfma_f32_16x16x32_bf16 v[{CS+4*j}:{CS+4*j+3}], v[{w}:{w+3}], v[{ONES}:{ONES+3}], {src(CS+4*j)}")
        if j==0:
            a(f"v_mfma_f32_16x16x32_bf16 v[{SM}:{SM+3}], v[{ONES}:{ONES+3}], v[{x[0]}:{x[0]+3}], {src(SM)}")
        if j==1:
            a(f"v_mfma_f32_16x16x32_bf16 v[{SQ}:{SQ+3}], v[{x[0]}:{x[0]+3}], v[{x[0]}:{x[0]+3}], {src(SQ)}")
    g.extra=[ex]
    g.main(nv,lambda tb,j:f"v[{ACC+4*j}:{ACC+4*j+3}]")
    T=g.nfr; nvmax=T+16
    a("s_nop 7"); a("s_nop 7")
    a(f"v_and_b32 v{T}, 15, v1"); a(f"v_and_b32 v{T+1}, 3, v1")
    a(f"v_cmp_eq_u32 vcc, 1, v{T+1}"); a("s_nop 1"); a(f"v_cndmask_b32 v{T+2}, v{SQ}, v{SQ+1}, vcc")
    a(f"v_cmp_eq_u32 vcc, 2, v{T+1}"); a("s_nop 1"); a(f"v_cndmask_b32 v{T+2}, v{T+2}, v{SQ+2}, vcc")
    a(f"v_cmp_eq_u32 vcc, 3, v{T+1}"); a("s_nop 1"); a(f"v_cndmask_b32 v{T+2}, v{T+2}, v{SQ+3}, vcc")
    a(f"v_lshrrev_b32 v{T+3}, 2, v{T}"); a(f"v_lshl_add_u32 v{T+3}, v{T+3}, 4, v{T}"); a(f"v_lshlrev_b32 v{T+3}, 2, v{T+3}")
    a(f"ds_bpermute_b32 v{T+2}, v{T+3}, v{T+2}")
    MEAN,RS=T+4,T+5
    a(f"v_mul_f32 v{MEAN}, {F(1/640):#x}, v{SM}"); a("s_waitcnt lgkmcnt(0)")
    a(f"v_mul_f32 v{T+2}, {F(1/640):#x}, v{T+2}"); a(f"v_fma_f32 v{T+2}, -v{MEAN}, v{MEAN}, v{T+2}")
    a(f"v_max_f32 v{T+2}, 0, v{T+2}"); a(f"v_add_f32 v{T+2}, {F(1e-5):#x}, v{T+2}"); a(f"v_rsq_f32 v{RS}, v{T+2}"); a("s_nop 0")
    a(f"v_mul_f32 v{T+6}, {F(20**-0.5*math.log2(math.e)):#x}, v{RS}")
    TOK=T+7; a(f"s_lshl_b32 s36, s32, 4"); a("s_add_u32 s36, s36, s33"); a(f"v_add_u32 v{TOK}, s36, v{T}")
    G=T+8; a(f"v_lshrrev_b32 v{G}, 4, v1")
    a(f"v_mul_u32_u24 v{T+9}, 1280, v{TOK}"); a(f"v_lshl_add_u32 v{T+9}, v{G}, 3, v{T+9}"); a(f"v_add_u32 v{T+9}, s34, v{T+9}")
    for j in range(6):
        for r in range(4):
            a(f"v_fma_f32 v{ACC+4*j+r}, -v{MEAN}, v{CS+4*j+r}, v{ACC+4*j+r}")
            a(f"v_mul_f32 v{ACC+4*j+r}, v{ACC+4*j+r}, v{T+6 if j<5 else RS}")
        if j<5: cvt_store8(a,ACC+4*j,ACC+4*j+1,ACC+4*j+2,ACC+4*j+3,T+10+2*(j&1),T+9,20,imm=32*j)
    Y=ACC+20; P=T+14
    a(f"v_cvt_pk_bf16_f32 v{P}, v{Y}, v{Y+1}"); a(f"v_cvt_pk_bf16_f32 v{P+1}, v{Y+2}, v{Y+3}")
    D0=T+10; a("s_lshr_b32 s36, s35, 1"); a(f"v_lshl_add_u32 v{D0}, v{G}, 2, s36")
    TB_=T+11; a(f"v_lshrrev_b32 v{TB_}, 5, v{TOK}"); a(f"v_lshlrev_b32 v{TB_}, 11, v{TB_}")
    KAP=T+12; a(f"v_and_b32 v{KAP}, 31, v{TOK}")
    a("s_cmp_ge_u32 s51, 4"); a(f"s_cbranch_scc1 L_k1_v")
    AD=T+13
    a(f"v_lshrrev_b32 v{AD}, 3, v{D0}"); a(f"v_lshlrev_b32 v{AD}, 9, v{AD}")
    a(f"v_add_u32 v{AD}, v{AD}, v{TB_}"); a(f"v_lshl_add_u32 v{AD}, v{KAP}, 4, v{AD}")
    a(f"v_and_b32 v{T+9}, 7, v{D0}"); a(f"v_lshl_add_u32 v{AD}, v{T+9}, 1, v{AD}"); a(f"v_add_u32 v{AD}, {WS_KF:#x}, v{AD}")
    a(f"v_cmp_gt_u32 vcc, 2, v{G}"); a("s_and_saveexec_b64 s[40:41], vcc")
    a(f"buffer_store_dwordx2 v[{P}:{P+1}], v{AD}, s[20:23], 0 offen")
    a("s_mov_b64 exec, s[40:41]")
    for r in range(4):
        a(f"v_and_b32 v{Y+r}, 0x7fffffff, v{Y+r}")
    for rot in (8,4,2,1):
        a("s_nop 1")
        for r in range(4): a(f"v_max_f32_dpp v{Y+r}, v{Y+r}, v{Y+r} row_ror:{rot} row_mask:0xf bank_mask:0xf")
    a(f"v_lshlrev_b32 v{T+9}, 2, v{D0}"); a(f"v_add_u32 v{T+9}, {KMO}, v{T+9}")
    a(f"v_cmp_gt_u32 vcc, 2, v{G}"); a("s_and_saveexec_b64 s[40:41], vcc")
    for r in range(4): a(f"ds_max_f32 v{T+9}, v{Y+r} offset:{4*r}")
    a("s_mov_b64 exec, s[40:41]")
    a("s_cmp_lg_u32 s51, 3"); a("s_cbranch_scc1 L_k1_kskip")
    a(f"v_mov_b32 v{P}, 0x3f803f80"); a(f"v_mov_b32 v{P+1}, 0x00003f80")
    a(f"v_cmp_eq_u32 vcc, 1, v{G}"); a("s_and_saveexec_b64 s[40:41], vcc")
    a(f"buffer_store_dwordx2 v[{P}:{P+1}], v{AD}, s[20:23], 0 offen offset:8")
    a("s_mov_b64 exec, s[40:41]")
    Z=(T+16+3)//4*4; nvmax=Z+4
    for r in range(4): a(f"v_mov_b32 v{Z+r}, 0")
    a(f"v_lshl_add_u32 v{AD}, v{KAP}, 4, v{TB_}"); a(f"v_add_u32 v{AD}, {WS_KF+1536:#x}, v{AD}")
    a(f"v_cmp_eq_u32 vcc, 2, v{G}"); a("s_and_saveexec_b64 s[40:41], vcc")
    a(f"buffer_store_dwordx4 v[{Z}:{Z+3}], v{AD}, s[20:23], 0 offen")
    a("s_mov_b64 exec, s[40:41]")
    a.lab("L_k1_kskip")
    a("s_waitcnt lgkmcnt(0)"); a("s_barrier")
    a("s_cmp_lg_u32 s32, 0"); a(f"s_cbranch_scc1 L_{name}_end")
    a("s_lshr_b32 s36, s35, 1"); a(f"v_add_u32 v{T}, s36, v1"); a(f"v_lshlrev_b32 v{T}, 2, v{T}")
    a(f"v_add_u32 v{T+1}, {KMO}, v{T}"); a(f"ds_read_b32 v{T+2}, v{T+1}")
    a("s_lshl_b32 s36, s52, 7"); a(f"s_add_u32 s36, s36, {WS_KM:#x}"); a(f"v_add_u32 v{T}, s36, v{T}")
    a("v_cmp_gt_u32 vcc, 8, v1"); a("s_and_saveexec_b64 s[40:41], vcc"); a("s_waitcnt lgkmcnt(0)")
    a(f"buffer_store_dword v{T+2}, v{T}, s[20:23], 0 offen")
    a(f"s_branch L_{name}_end")
    a.lab("L_k1_v")
    AD=T+13
    a(f"v_lshrrev_b32 v{AD}, 4, v{KAP}"); a(f"v_lshl_add_u32 v{AD}, v{AD}, 10, v{TB_}")
    a(f"v_bfe_u32 v{T+9}, v{KAP}, 2, 1"); a(f"v_lshl_add_u32 v{AD}, v{T+9}, 9, v{AD}")
    a(f"v_and_b32 v{T+9}, 3, v{KAP}"); a(f"v_lshl_add_u32 v{AD}, v{T+9}, 1, v{AD}")
    a(f"v_bfe_u32 v{T+9}, v{KAP}, 3, 1"); a(f"v_lshl_add_u32 v{AD}, v{T+9}, 3, v{AD}")
    a(f"v_lshl_add_u32 v{AD}, v{D0}, 4, v{AD}"); a(f"v_add_u32 v{AD}, {WS_VF:#x}, v{AD}")
    a(f"v_cmp_gt_u32 vcc, 2, v{G}"); a("s_and_saveexec_b64 s[40:41], vcc")
    a(f"buffer_store_short v{P}, v{AD}, s[20:23], 0 offen"); a(f"buffer_store_short_d16_hi v{P}, v{AD}, s[20:23], 0 offen offset:16")
    a(f"buffer_store_short v{P+1}, v{AD}, s[20:23], 0 offen offset:32"); a(f"buffer_store_short_d16_hi v{P+1}, v{AD}, s[20:23], 0 offen offset:48")
    a("s_mov_b64 exec, s[40:41]")
    a("s_cmp_lg_u32 s51, 7"); a(f"s_cbranch_scc1 L_{name}_end")
    a(f"v_mov_b32 v{P}, 0x3f80"); a(f"v_cmp_eq_u32 vcc, 2, v{G}"); a("s_and_saveexec_b64 s[40:41], vcc")
    a(f"buffer_store_short v{P}, v{AD}, s[20:23], 0 offen")
    a(f"s_branch L_{name}_end")
    g.producer(name,DEPTH[name])
    tail(a,name,max(nvmax,g.pmax))
    return a.text(), g.lds+128

def k2():
    a=A(); name="k2_kernel"; head(a,name,256)
    QA0,QA1,QB0,QB1=4,8,12,16
    KS=[20,28]; VS=[36,44]; SA,SB=52,68; PA,PB=84,92; OA,OB=100,116
    T=132; R0,R1=2,3
    FLAG=131072; CSL=131072+64; MXL=131072+256
    srd(a,4,PWS,WS_KF,0x60000); srd(a,8,PWS,0,0x800000)
    a("s_lshr_b32 s33, s2, 2"); a("s_and_b32 s34, s2, 3")
    a("s_and_b32 s35, s32, 3"); a("s_lshr_b32 s36, s32, 2")
    a("s_lshr_b32 s37, s32, 1"); a("s_and_b32 s38, s32, 1")
    a("s_lshl_b32 s40, s37, 14"); a("s_lshl_b32 s39, s38, 13"); a("s_add_u32 s40, s40, s39")
    a("s_and_b32 s41, s37, 1"); a("s_lshl_b32 s41, s41, 18")
    a("s_lshr_b32 s42, s37, 1"); a("s_lshl_b32 s42, s42, 16"); a("s_add_u32 s41, s41, s42"); a("s_add_u32 s41, s41, s39")
    a("v_lshlrev_b32 v132, 4, v1")
    VD=252; a(f"v_lshlrev_b32 v{VD}, 4, v1")
    def dma(st):
        for hf in range(2):
            a(f"s_add_u32 m0, s40, {(st&1)*65536+hf*4096}"); a(f"s_add_u32 s43, s41, {st*16384+hf*4096}")
            for i in range(4): a(f"buffer_load_dwordx4 v{VD}, s[4:7], s43 offen offset:{i*1024} lds")
    def dma2(st,k):
        hf,i0_=divmod(k,2)
        a(f"s_add_u32 m0, s40, {(st&1)*65536+hf*4096}"); a(f"s_add_u32 s43, s41, {st*16384+hf*4096}")
        for i in (2*i0_,2*i0_+1): a(f"buffer_load_dwordx4 v{VD}, s[4:7], s43 offen offset:{i*1024} lds")
    a("s_mov_b32 s60, 0")
    KM=T+4
    a(f"v_add_u32 v{T+1}, {WS_KM:#x}, v{VD}")
    for i in range(4): a(f"buffer_load_dwordx4 v[{KM+4*i}:{KM+4*i+3}], v{T+1}, s[8:11], 0 offen offset:{1024*i}")
    TOK=250; HI=251; QOFF=249
    a(f"v_and_b32 v{TOK}, 31, v1"); a("s_lshl_b32 s39, s33, 5"); a(f"v_add_u32 v{TOK}, s39, v{TOK}"); a(f"v_lshrrev_b32 v{HI}, 5, v1")
    a("s_lshl_b32 s39, s34, 3"); a("s_lshl_b32 s44, s35, 1"); a("s_add_u32 s39, s39, s44"); a("s_mul_i32 s39, s39, 40")
    a(f"v_mul_u32_u24 v{QOFF}, 1280, v{TOK}"); a(f"v_add_u32 v{QOFF}, s39, v{QOFF}")
    a(f"v_lshl_add_u32 v{T}, v{HI}, 4, v{QOFF}")
    a(f"buffer_load_dwordx4 v[{QA0}:{QA0+3}], v{T}, s[8:11], 0 offen"); a(f"buffer_load_dwordx2 v[{QA1}:{QA1+1}], v{QOFF}, s[8:11], 0 offen offset:32")
    a(f"buffer_load_dwordx4 v[{QB0}:{QB0+3}], v{T}, s[8:11], 0 offen offset:40"); a(f"buffer_load_dwordx2 v[{QB1}:{QB1+1}], v{QOFF}, s[8:11], 0 offen offset:72")
    dma(0)
    a("s_lshl_b32 s39, s36, 15"); a(f"v_add_u32 v{R0}, s39, v{VD}"); a(f"v_add_u32 v{R1}, 65536, v{R0}")
    a(f"v_mov_b32 v{T}, 0"); a(f"v_lshlrev_b32 v{T+1}, 2, v1"); a(f"v_add_u32 v{T+1}, {FLAG}, v{T+1}"); a(f"ds_write_b32 v{T+1}, v{T}")
    CL=T+20; CA=T+36; PFA=T+37; PFB=T+38; PD_=T+40
    a("s_cmp_lt_u32 s2, 108"); a(f"s_cselect_b32 s12, s{PWG}, s{PWU}"); a(f"s_cselect_b32 s13, s{PWG+1}, s{PWU+1}")
    a(f"s_mov_b32 s14, {640*3456}"); a("s_mov_b32 s15, 0x20000")
    a("s_sub_u32 s39, s2, 108"); a("s_cmp_lt_u32 s2, 108"); a("s_cselect_b32 s39, s2, s39"); a("s_lshl_b32 s39, s39, 5")
    a("s_cmp_ge_u32 s2, 216"); a(f"s_cselect_b32 s39, {640*3456}, s39")
    a(f"v_lshrrev_b32 v{CA}, 1, v0"); a(f"v_mul_u32_u24 v{CA}, 3456, v{CA}"); a(f"v_and_b32 v{T+3}, 1, v0")
    a(f"v_lshl_add_u32 v{CA}, v{T+3}, 4, v{CA}"); a(f"v_add_u32 v{CA}, s39, v{CA}")
    srd(a,16,PWD,0,1728*1280); srd(a,20,PWO,0,640*1280); srd(a,24,PWS,WS_PO,0x780000)
    srd(a,28,PWG,0,640*3456); srd(a,48,PWU,0,640*3456)
    RS=T+44; RD=T+50; RB=T+56
    jobs=[(10,640,1280,200,0),(10,1728,1280,540,0),(10,1728,1280,540,1),(14,640,3456,560,0),(14,640,3456,560,1)]
    for n_,(nc,K,pitch,P,r) in enumerate(jobs):
        mh=lambda d:(2**32+d-1)//d
        a(f"s_mul_i32 s39, s2, {P}"); a(f"s_add_u32 s39, s39, {512*r}"); a(f"v_add_u32 v{T}, s39, v0")
        a(f"s_mov_b32 s44, {mh(nc):#x}"); a(f"v_mul_hi_u32 v{T+1}, v{T}, s44")
        a(f"v_mul_u32_u24 v{T+2}, {nc}, v{T+1}"); a(f"v_sub_u32 v{T+2}, v{T}, v{T+2}")
        a(f"s_mov_b32 s44, {mh(K):#x}"); a(f"v_mul_hi_u32 v{T+3}, v{T+1}, s44")
        a(f"v_mul_u32_u24 v{RS+n_}, {K}, v{T+3}"); a(f"v_sub_u32 v{T+1}, v{T+1}, v{RS+n_}")
        a(f"v_mul_u32_u24 v{T+1}, {pitch}, v{T+1}"); a(f"v_mul_u32_u24 v{T+3}, {nc}, v{T+3}"); a(f"v_add_u32 v{T+2}, v{T+2}, v{T+3}")
        a(f"v_lshl_add_u32 v{RS+n_}, v{T+2}, 4, v{T+1}"); a(f"v_lshlrev_b32 v{RD+n_}, 4, v{T}")
        if P-512*r<512:
            a(f"v_cmp_gt_u32 vcc, {P-512*r}, v0" if P-512*r>64 else f"v_cmp_gt_u32 vcc, {P-512*r}, v0"); a(f"v_mov_b32 v{T}, 0x7f000000"); a("s_nop 0")
            a(f"v_cndmask_b32 v{RS+n_}, v{T}, v{RS+n_}, vcc"); a(f"v_cndmask_b32 v{RD+n_}, v{T}, v{RD+n_}, vcc")
    moves=[(0,20,0),(1,16,WS_PD-WS_PO),(2,16,WS_PD-WS_PO),(3,28,WS_PG-WS_PO),(4,28,WS_PG-WS_PO),(3,48,WS_PU-WS_PO),(4,48,WS_PU-WS_PO)]
    assert RB%4==0 and RB+28<=248
    SEL=T+32
    a(f"v_and_b32 v{T+3}, 7, v1")
    for q in range(4):
        a(f"v_mov_b32 v{SEL+q}, 0"); a(f"v_cmp_eq_u32 vcc, {2*q}, v{T+3}"); a(f"v_mov_b32 v{T+1}, 0x3f80"); a("s_nop 0"); a(f"v_cndmask_b32 v{SEL+q}, v{SEL+q}, v{T+1}, vcc")
        a(f"v_cmp_eq_u32 vcc, {2*q+1}, v{T+3}"); a(f"v_mov_b32 v{T+1}, 0x3f800000"); a("s_nop 0"); a(f"v_cndmask_b32 v{SEL+q}, v{SEL+q}, v{T+1}, vcc")
    a("s_waitcnt vmcnt(12)")
    for r in range(4):
        a(f"v_max3_f32 v{KM+r}, v{KM+r}, v{KM+4+r}, v{KM+8+r}"); a(f"v_max_f32 v{KM+r}, v{KM+r}, v{KM+12+r}")
    a("s_nop 1")
    for r in range(4): a(f"v_max_f32_dpp v{KM+r}, v{KM+r}, v{KM+r} row_ror:8 row_mask:0xf bank_mask:0xf")
    for r in range(4): a(f"ds_swizzle_b32 v{KM+4+r}, v{KM+r} offset:0x401F")
    a("s_waitcnt lgkmcnt(0)")
    for r in range(4): a(f"v_max_f32 v{KM+r}, v{KM+r}, v{KM+4+r}"); a(f"v_mov_b32 v{KM+4+r}, v{KM+r}")
    a("s_nop 1")
    for r in range(4): a(f"v_permlane32_swap_b32 v{KM+r}, v{KM+4+r}")
    for r in range(4): a(f"v_max_f32 v{KM+r}, v{KM+r}, v{KM+4+r}")
    a(f"v_mul_f32 v{KM+4}, v{KM}, v{KM}")
    for r in range(1,4): a(f"v_fmac_f32 v{KM+4}, v{KM+r}, v{KM+r}")
    a(f"v_and_b32 v{T+3}, 7, v1"); a(f"v_cmp_gt_u32 vcc, 5, v{T+3}"); a("s_nop 1"); a(f"v_cndmask_b32 v{KM+4}, 0, v{KM+4}, vcc")
    for rot in (1,2,4):
        a("s_nop 1"); a(f"v_add_f32_dpp v{KM+4}, v{KM+4}, v{KM+4} row_ror:{rot} row_mask:0xf bank_mask:0xf")
    KB=248
    a(f"v_sqrt_f32 v{KB}, v{KM+4}"); a("s_nop 0"); a(f"v_mul_f32 v{KB}, {F(1.03):#x}, v{KB}")
    a("s_waitcnt vmcnt(8)")
    def setm(f1,mreg):
        a(f"v_sub_f32 v{T}, 0, v{mreg}"); a(f"v_and_b32 v{T+1}, 0xffff0000, v{T}"); a(f"v_sub_f32 v{T}, v{T}, v{T+1}")
        a(f"v_and_b32 v{T+2}, 0xffff0000, v{T}"); a(f"v_sub_f32 v{T}, v{T}, v{T+2}")
        a(f"v_lshrrev_b32 v{T+1}, 16, v{T+1}"); a(f"v_or_b32 v{f1+2}, v{T+1}, v{T+2}"); a(f"v_lshrrev_b32 v{f1+3}, 16, v{T}")
        a(f"v_cmp_eq_u32 vcc, 0, v{HI}"); a("s_nop 1")
        for r in range(4): a(f"v_cndmask_b32 v{f1+r}, 0, v{f1+r}, vcc")
    for (f0,f1) in ((QA0,QA1),(QB0,QB1)):
        a(f"v_cmp_eq_u32 vcc, 0, v{HI}"); a("s_nop 1")
        for r in range(2): a(f"v_cndmask_b32 v{f1+r}, 0, v{f1+r}, vcc")
        first=True
        for rg in [f0,f0+1,f0+2,f0+3,f1,f1+1]:
            a(f"v_lshlrev_b32 v{T}, 16, v{rg}"); a(f"v_and_b32 v{T+1}, 0xffff0000, v{rg}")
            if first: a(f"v_mul_f32 v{T+3}, v{T}, v{T}"); first=False
            else: a(f"v_fmac_f32 v{T+3}, v{T}, v{T}")
            a(f"v_fmac_f32 v{T+3}, v{T+1}, v{T+1}")
        a(f"v_mov_b32 v{T+2}, v{T+3}"); a("s_nop 1"); a(f"v_permlane32_swap_b32 v{T+3}, v{T+2}"); a(f"v_add_f32 v{T+3}, v{T+3}, v{T+2}")
        a(f"v_sqrt_f32 v{T+3}, v{T+3}"); a("s_nop 0"); a(f"v_mul_f32 v{T+3}, v{T+3}, v{KB}")
        setm(f1,T+3)
    mark(a,1)
    a.lab("L_k2_main")
    def rdK(t,st_):
        R=R0 if ((t>>3)&1)==0 else R1; o=(t&7)*2048
        for f in range(2): a(f"ds_read_b128 v[{KS[t&1]+4*f}:{KS[t&1]+4*f+3}], v{R} offset:{o+1024*f}")
    def rdV(t):
        R=R0 if ((t>>3)&1)==0 else R1; o=16384+(t&7)*2048
        for f in range(2): a(f"ds_read_b128 v[{VS[t&1]+4*f}:{VS[t&1]+4*f+3}], v{R} offset:{o+1024*f}")
    def qk(S,Q0,Q1,t,p):
        k=KS[t&1]
        if p==0: a(f"v_mfma_f32_32x32x16_bf16 v[{S}:{S+15}], v[{k}:{k+3}], v[{Q0}:{Q0+3}], 0")
        else: a(f"v_mfma_f32_32x32x16_bf16 v[{S}:{S+15}], v[{k+4}:{k+7}], v[{Q1}:{Q1+3}], v[{S}:{S+15}]")
    def pv(O,P,t,p):
        v=VS[t&1]+4*p; c=f"v[{O}:{O+15}]" if not(t==0 and p==0) else "0"
        a(f"v_mfma_f32_32x32x16_bf16 v[{O}:{O+15}], v[{v}:{v+3}], v[{P+4*p}:{P+4*p+3}], {c}")
    e=lambda S,i: a(f"v_exp_f32 v{S+i}, v{S+i}")
    c=lambda S,P,k: a(f"v_cvt_pk_bf16_f32 v{P+k}, v{S+2*k}, v{S+2*k+1}")
    a("s_waitcnt vmcnt(0) lgkmcnt(0)"); a("s_barrier")
    rdK(0,0); rdV(0); a("s_waitcnt lgkmcnt(2)")
    qk(SA,QA0,QA1,0,0); qk(SA,QA0,QA1,0,1); a("s_nop 7"); a("s_nop 7")
    mark(a,2)
    NT=32
    def phase(X,PX,OX,Y,tX,tY,prev,mid):
        S=X
        if Y: qk(Y[0],Y[1],Y[2],tY,0)
        for i in range(4): e(S,i)
        if prev: pv(prev[0],prev[1],prev[2],1)
        mid()
        for i in range(4,8): e(S,i)
        c(S,PX,0); c(S,PX,1)
        if Y: qk(Y[0],Y[1],Y[2],tY,1)
        c(S,PX,2); c(S,PX,3)
        for i in range(8,12): e(S,i)
        pv(OX,PX,tX,0)
        for i in range(12,16): e(S,i)
        for k in range(4,8): c(S,PX,k)
    for t in range(NT):
        def midA():
            if t+1<NT and (t+1)%8==0:
                a(f"s_waitcnt vmcnt({ {7:6,15:4,23:3}[t] }) lgkmcnt(0)"); a("s_barrier")
            if t%8<4 and t//8+1<4: dma2(t//8+1,t%8)
            def ldcl(i): a(f"s_mov_b32 s44, {256*3456*i}"); a(f"buffer_load_dwordx4 v[{CL+4*i}:{CL+4*i+3}], v{CA}, s[12:15], s44 offen")
            def ldr(n_): jb_,sr,db=moves[n_]; a(f"buffer_load_dwordx4 v[{RB+4*n_}:{RB+4*n_+3}], v{RS+jb_}, s[{sr}:{sr+3}], 0 offen")
            def str_(n_): jb_,sr,db=moves[n_]; a(f"s_mov_b32 s44, {db:#x}"); a(f"buffer_store_dwordx4 v[{RB+4*n_}:{RB+4*n_+3}], v{RD+jb_}, s[24:27], s44 offen sc1")
            if t==4: ldcl(0); ldcl(1)
            if t==5: ldcl(2); ldr(0)
            if t==6: ldr(1); ldr(2)
            if t==12: ldr(3); ldr(4)
            if t==13: ldr(5); ldr(6)
            if t in (20,21,22): str_(t-20)
            if t in (24,25,26,27): str_(t-21)
            if t==16:
                for i in range(3):
                    a(f"v_mfma_f32_16x16x32_bf16 v[{KM}:{KM+3}], v[{CL+4*i}:{CL+4*i+3}], v[{SEL}:{SEL+3}], {'0' if i==0 else f'v[{KM}:{KM+3}]'}")
            if t==17:
                a(f"v_add_f32 v{KM}, v{KM}, v{KM+2}"); a(f"v_add_f32 v{KM+1}, v{KM+1}, v{KM+3}")
                a(f"v_and_b32 v{T}, 15, v1"); a(f"v_lshlrev_b32 v{T+1}, 2, v{T}"); a(f"v_add_u32 v{T+1}, {CSL}, v{T+1}")
                a("s_cmp_eq_u32 s60, 0"); a("s_cbranch_scc0 L_k2_nocsadd")
                a(f"v_cmp_gt_u32 vcc, 8, v{T}"); a("s_and_saveexec_b64 s[46:47], vcc")
                a(f"ds_add_f32 v{T+1}, v{KM}"); a(f"ds_add_f32 v{T+1}, v{KM+1} offset:32")
                a("s_mov_b64 exec, s[46:47]")
                a.lab("L_k2_nocsadd")
            if t+1<NT: rdK(t+1,0); rdV(t+1)
        a("s_waitcnt lgkmcnt(0)")
        phase(SA,PA,OA,(SB,QB0,QB1),t,t,(OB,PB,t-1) if t>0 else None,midA)
        if t+1<NT: a("s_waitcnt lgkmcnt(2)")
        phase(SB,PB,OB,(SA,QA0,QA1) if t+1<NT else None,t,t+1,(OA,PA,t),lambda:None)
    a("s_nop 1"); pv(OB,PB,NT-1,1)
    a("s_nop 7"); a("s_nop 7")
    mark(a,3)
    a("s_lshl_b32 s39, s35, 13"); a("s_mul_i32 s44, s36, 3072"); a("s_add_u32 s44, s44, s39"); a(f"v_add_u32 v{T}, s44, v{VD}")
    a("s_xor_b32 s44, s36, 1"); a("s_mul_i32 s44, s44, 3072"); a("s_add_u32 s44, s44, s39"); a(f"v_add_u32 v{T+1}, s44, v{VD}")
    a("s_cmp_eq_u32 s36, 0"); a("s_cbranch_scc1 L_k2_lo")
    for q in range(3): a(f"ds_write_b128 v{T}, v[{OA+4*q}:{OA+4*q+3}] offset:{q*1024}")
    for r in range(12): a(f"v_mov_b32 v{OA+r}, v{OB+r}")
    a("s_branch L_k2_cmb")
    a.lab("L_k2_lo")
    for q in range(3): a(f"ds_write_b128 v{T}, v[{OB+4*q}:{OB+4*q+3}] offset:{q*1024}")
    a.lab("L_k2_cmb")
    a("s_waitcnt lgkmcnt(0)"); a("s_barrier")
    for q in range(3): a(f"ds_read_b128 v[{SA+q*4}:{SA+q*4+3}], v{T+1} offset:{q*1024}")
    a("s_waitcnt lgkmcnt(0)")
    for r in range(12): a(f"v_add_f32 v{OA+r}, v{OA+r}, v{SA+r}")
    LA=T+2
    a(f"v_mov_b32 v{T+4}, v{OA+8}"); a(f"v_mov_b32 v{LA}, v{OA+8}"); a("s_nop 1"); a(f"v_permlane32_swap_b32 v{T+4}, v{LA}")
    a(f"v_mov_b32 v{T+6}, {F(2.0**-90):#x}"); a("s_nop 0")
    a(f"v_cmp_nge_f32 vcc, v{LA}, v{T+6}"); a("s_nop 1")
    a("s_cbranch_vccz L_k2_chk")
    a(f"v_mov_b32 v{T+4}, 1"); a(f"v_mov_b32 v{T+5}, {FLAG}"); a(f"ds_write_b32 v{T+5}, v{T+4}"); a("s_waitcnt lgkmcnt(0)")
    a.lab("L_k2_chk")
    a(f"v_rcp_f32 v{LA}, v{LA}")
    OADR=T+10
    a("s_lshl_b32 s39, s34, 3"); a("s_lshl_b32 s44, s35, 1"); a("s_add_u32 s39, s39, s44"); a("s_add_u32 s39, s39, s36"); a("s_mul_i32 s39, s39, 20")
    a(f"v_lshrrev_b32 v{T+4}, 4, v{TOK}"); a(f"v_mul_u32_u24 v{T+4}, 20480, v{T+4}"); a(f"v_and_b32 v{T+5}, 15, v{TOK}")
    a(f"v_lshl_add_u32 v{T+4}, v{T+5}, 4, v{T+4}"); a(f"v_add_u32 v{T+4}, {WS_O:#x}, v{T+4}")
    for q in range(3):
        a(f"v_lshl_add_u32 v{T+5}, v{HI}, 2, s39")
        if q: a(f"v_add_u32 v{T+5}, {8*q}, v{T+5}")
        a(f"v_lshrrev_b32 v{T+6}, 5, v{T+5}"); a(f"v_lshl_add_u32 v{OADR+q}, v{T+6}, 10, v{T+4}")
        a(f"v_bfe_u32 v{T+6}, v{T+5}, 2, 2"); a(f"v_lshl_add_u32 v{OADR+q}, v{T+6}, 8, v{OADR+q}")
        a(f"v_bfe_u32 v{T+6}, v{T+5}, 4, 1"); a(f"v_lshl_add_u32 v{OADR+q}, v{T+6}, 3, v{OADR+q}")
    for r in range(12): a(f"v_mul_f32 v{OA+r}, v{OA+r}, v{LA}")
    for q in range(3):
        a(f"v_cvt_pk_bf16_f32 v{SA+2*q}, v{OA+4*q}, v{OA+4*q+1}"); a(f"v_cvt_pk_bf16_f32 v{SA+2*q+1}, v{OA+4*q+2}, v{OA+4*q+3}")
    a("s_barrier")
    a(f"v_mov_b32 v{T+5}, {FLAG}"); a(f"ds_read_b32 v{T+4}, v{T+5}")
    a(f"v_lshlrev_b32 v{T+8}, 2, v1"); a(f"v_add_u32 v{T+7}, {CSL}, v{T+8}"); a(f"ds_read_b32 v{T+6}, v{T+7}")
    a("s_waitcnt lgkmcnt(0)"); a(f"v_readfirstlane_b32 s44, v{T+4}")
    a("s_add_u32 s44, s44, s60"); a("s_cmp_eq_u32 s44, 1"); a("s_cbranch_scc0 L_k2_fin")
    a("s_cmp_eq_u32 s60, 0"); a("s_cbranch_scc1 L_k2_fallback")
    a.lab("L_k2_fin")
    for q in range(2): a(f"buffer_store_dwordx2 v[{SA+2*q}:{SA+2*q+1}], v{OADR+q}, s[8:11], 0 offen")
    a(f"v_cmp_eq_u32 vcc, 0, v{HI}"); a("s_and_saveexec_b64 s[46:47], vcc")
    a(f"buffer_store_dwordx2 v[{SA+4}:{SA+5}], v{OADR+2}, s[8:11], 0 offen")
    a("s_mov_b64 exec, s[46:47]")
    a("s_cmp_eq_u32 s32, 4"); a(f"s_cbranch_scc0 L_{name}_end")
    a("s_cmp_lt_u32 s2, 216"); a(f"s_cbranch_scc0 L_{name}_end")
    a("s_lshl_b32 s39, s2, 6"); a(f"s_add_u32 s39, s39, {WS_CS:#x}"); a(f"v_add_u32 v{T+5}, s39, v{T+8}")
    a("v_cmp_gt_u32 vcc, 16, v1"); a("s_and_saveexec_b64 s[46:47], vcc")
    a(f"buffer_store_dword v{T+6}, v{T+5}, s[8:11], 0 offen")
    a(f"s_branch L_{name}_end")
    a.lab("L_k2_fallback")
    a("s_mov_b32 s60, 1")
    for f1 in (QA1,QB1):
        a(f"v_mov_b32 v{f1+2}, 0"); a(f"v_mov_b32 v{f1+3}, 0")
    a(f"v_mov_b32 v{T+8}, 0xff800000"); a(f"v_mov_b32 v{T+9}, 0xff800000")
    a("s_lshl_b32 s44, s36, 16"); a("s_add_u32 s45, s44, 65536")
    a.lab("L_k2_mx")
    a(f"buffer_load_dwordx4 v[{KS[0]}:{KS[0]+3}], v{VD}, s[4:7], s44 offen"); a(f"buffer_load_dwordx4 v[{KS[0]+4}:{KS[0]+7}], v{VD}, s[4:7], s44 offen offset:1024")
    a("s_waitcnt vmcnt(0)")
    qk(SA,QA0,QA1,0,0); qk(SA,QA0,QA1,0,1); qk(SB,QB0,QB1,0,0); qk(SB,QB0,QB1,0,1); a("s_nop 7"); a("s_nop 7")
    for S,M in ((SA,T+8),(SB,T+9)):
        for i in range(0,16,2): a(f"v_max3_f32 v{M}, v{S+i}, v{S+i+1}, v{M}")
    a("s_add_u32 s44, s44, 2048"); a("s_cmp_lt_u32 s44, s45"); a("s_cbranch_scc1 L_k2_mx")
    for M in (T+8,T+9):
        a(f"v_mov_b32 v{T+4}, v{M}"); a("s_nop 1"); a(f"v_permlane32_swap_b32 v{M}, v{T+4}"); a(f"v_max_f32 v{M}, v{M}, v{T+4}")
    a("s_lshl_b32 s44, s32, 9"); a(f"s_add_u32 s44, s44, {MXL}"); a(f"v_lshlrev_b32 v{T+4}, 2, v1"); a(f"v_add_u32 v{T+5}, s44, v{T+4}")
    a(f"ds_write_b32 v{T+5}, v{T+8}"); a(f"ds_write_b32 v{T+5}, v{T+9} offset:256"); a("s_waitcnt lgkmcnt(0)"); a("s_barrier")
    a("s_xor_b32 s45, s32, 4"); a("s_lshl_b32 s45, s45, 9"); a(f"s_add_u32 s45, s45, {MXL}"); a(f"v_add_u32 v{T+5}, s45, v{T+4}")
    a(f"ds_read_b32 v{T+6}, v{T+5}"); a(f"ds_read_b32 v{T+7}, v{T+5} offset:256"); a("s_waitcnt lgkmcnt(0)")
    a(f"v_max_f32 v{T+8}, v{T+8}, v{T+6}"); a(f"v_max_f32 v{T+9}, v{T+9}, v{T+7}")
    setm(QA1,T+8); setm(QB1,T+9)
    dma(0)
    a("s_branch L_k2_main")
    tail(a,name,256)
    return a.text(), 131072+256+8*512

def proj(name,K,pitchA,xptr,xoff,xbytes,wptr,resptr,resoff,outptr,outoff,stats):
    a=A(); head(a,name,256); tile_map_32x8(a)
    srd(a,4,xptr,xoff,xbytes); srd(a,8,PWS,wptr,K*1280)
    srd(a,20,outptr,outoff,ACT_BYTES); srd(a,24,resptr,resoff,ACT_BYTES)
    if stats: srd(a,28,PWS,WS_ST,2048*64)
    a(f"s_mul_i32 s34, s51, {160*K if PACK else 160}")
    g=Gemm(a,64,K,pitchA,[(10,160 if PACK else 1280,5)],NS=12,PD=2,free='prev',PX=int(os.environ.get("PX",8))); g.rot=(0,0); g.bs=BS[name]
    a("s_cmp_ge_u32 s32, 4"); a(f"s_cbranch_scc1 L_{name}_prod")
    nv=g.rdaddr(2); nv=(nv+3)//4*4
    ACC=nv; nv+=20; RES=nv; nv+=10; TOK=nv; OFF=nv+1; G=nv+2; OFFF=nv+3; nv+=4; nv=(nv+3)//4*4
    a(f"v_and_b32 v{TOK}, 15, v1"); a("s_lshl_b32 s36, s32, 4"); a("s_add_u32 s36, s36, s33"); a(f"v_add_u32 v{TOK}, s36, v{TOK}")
    a(f"v_lshrrev_b32 v{G}, 4, v1"); a(f"v_mul_u32_u24 v{OFF}, 1280, v{TOK}"); a(f"v_lshl_add_u32 v{OFF}, v{G}, 3, v{OFF}"); a("s_mul_i32 s37, s51, 160"); a(f"v_add_u32 v{OFF}, s37, v{OFF}")
    a("s_lshr_b32 s36, s36, 4"); a("s_mul_i32 s36, s36, 20480"); a(f"v_lshl_add_u32 v{OFFF}, v1, 4, s36")
    a("s_mul_i32 s36, s51, 5")
    for j in range(5):
        a(f"s_add_u32 s37, s36, {j}"); a("s_lshr_b32 s38, s37, 1"); a("s_lshl_b32 s38, s38, 10"); a("s_and_b32 s37, s37, 1"); a("s_lshl_b32 s37, s37, 3"); a(f"s_add_u32 s{56+j}, s38, s37")
    rowm=lambda j: f"v{OFF}, s[%d:%d], 0 offen offset:{32*j}"
    frag=lambda j: f"v{OFFF}, s[%d:%d], s{56+j} offen"
    radr,oadr=(rowm,frag) if stats else (frag,rowm)
    def ad():
        for j in range(5): a(f"buffer_load_dwordx2 v[{RES+2*j}:{RES+2*j+1}], "+radr(j)%(24,27))
    g.after_dma=ad
    g.main(nv,lambda tb,j:f"v[{ACC+4*j}:{ACC+4*j+3}]")
    T=(g.nfr+3)//4*4
    a("s_nop 7"); a("s_waitcnt vmcnt(0)")
    for j in range(5):
        for h in range(2):
            a(f"v_lshlrev_b32 v{T}, 16, v{RES+2*j+h}"); a(f"v_and_b32 v{T+1}, 0xffff0000, v{RES+2*j+h}")
            a(f"v_add_f32 v{ACC+4*j+2*h}, v{ACC+4*j+2*h}, v{T}"); a(f"v_add_f32 v{ACC+4*j+2*h+1}, v{ACC+4*j+2*h+1}, v{T+1}")
            a(f"v_cvt_pk_bf16_f32 v{RES+2*j+h}, v{ACC+4*j+2*h}, v{ACC+4*j+2*h+1}")
        a(f"buffer_store_dwordx2 v[{RES+2*j}:{RES+2*j+1}], "+oadr(j)%(20,23))
    if stats:
        for j in range(5):
            for h in range(2):
                a(f"v_lshlrev_b32 v{ACC+4*j+2*h}, 16, v{RES+2*j+h}"); a(f"v_and_b32 v{ACC+4*j+2*h+1}, 0xffff0000, v{RES+2*j+h}")
        def red(r):
            a(f"ds_swizzle_b32 v{T+3}, v{r} offset:0x401F"); a("s_waitcnt lgkmcnt(0)"); a(f"v_add_f32 v{r}, v{r}, v{T+3}")
            a(f"v_mov_b32 v{T+3}, v{r}"); a("s_nop 1"); a(f"v_permlane32_swap_b32 v{r}, v{T+3}"); a(f"v_add_f32 v{r}, v{r}, v{T+3}")
        a(f"v_add_f32 v{T}, v{ACC}, v{ACC+1}")
        for i in range(2,20): a(f"v_add_f32 v{T}, v{T}, v{ACC+i}")
        red(T)
        a(f"v_mul_f32 v{T+2}, {F(1/80):#x}, v{T}")
        for i in range(20):
            a(f"v_sub_f32 v{ACC+i}, v{ACC+i}, v{T+2}")
            a(f"v_mul_f32 v{T+1}, v{ACC}, v{ACC}" if i==0 else f"v_fmac_f32 v{T+1}, v{ACC+i}, v{ACC+i}")
        red(T+1)
        a(f"v_lshlrev_b32 v{T+2}, 6, v{TOK}"); a("s_lshl_b32 s36, s51, 3"); a(f"v_add_u32 v{T+2}, s36, v{T+2}")
        a(f"v_cmp_eq_u32 vcc, 0, v{G}"); a("s_and_saveexec_b64 s[40:41], vcc")
        a(f"buffer_store_dwordx2 v[{T}:{T+1}], v{T+2}, s[28:31], 0 offen")
    a(f"s_branch L_{name}_end")
    g.producer(name,DEPTH[name])
    tail(a,name,max(T+8,g.pmax))
    return a.text(), g.lds
def k3(): return proj("k3_kernel",640,1280,PWS,WS_O,ACT_BYTES,WS_PO,PX,0,PWS,WS_H,True)
def k5(): return proj("k5_kernel",1728,3456,PWS,WS_HH,2048*3456,WS_PD,PWS,WS_H,POUT,0,False)
def k4():
    a=A(); name="k4_kernel"; head(a,name,256)
    a("s_and_b32 s36, s2, 7"); a("s_lshr_b32 s37, s2, 3")
    a("s_and_b32 s38, s36, 1"); a("s_lshl_b32 s38, s38, 3"); a("s_and_b32 s39, s37, 7"); a("s_add_u32 s38, s38, s39"); a("s_lshl_b32 s33, s38, 7")
    a("s_lshr_b32 s36, s36, 1"); a("s_lshl_b32 s36, s36, 2"); a("s_lshr_b32 s37, s37, 3"); a("s_add_u32 s51, s36, s37")
    srd(a,4,PWS,WS_H,ACT_BYTES); srd(a,8,PWS,WS_PG,16*640*224); srd(a,12,PWS,WS_PU,16*640*224)
    srd(a,20,PWS,WS_HH,2048*3456); srd(a,24,PWS,WS_ST,2048*64); srd(a,28,PWS,WS_CS,3456*4)
    a(f"s_mul_i32 s34, s51, {224*640 if PACK else 224}"); a("s_mov_b32 s35, s34")
    a("s_mov_b32 s55, s39"); a("s_mov_b32 s56, s37")
    g=Gemm(a,128,640,1280,[(14,224 if PACK else 3456,7),(14,224 if PACK else 3456,7)],NS=5,PD=1,free='cur',jb=4,PX=4); g.rot=(0,0)
    a("s_cmp_ge_u32 s32, 4"); a(f"s_cbranch_scc1 L_{name}_prod")
    ST=200
    CSO=g.lds
    TOK=[2,3]; G=4; MEAN=[5,6]; RS2=[7,8]
    a(f"v_and_b32 v{TOK[0]}, 15, v1"); a("s_lshl_b32 s36, s32, 5"); a("s_add_u32 s36, s36, s33"); a(f"v_add_u32 v{TOK[0]}, s36, v{TOK[0]}")
    a(f"v_add_u32 v{TOK[1]}, 16, v{TOK[0]}"); a(f"v_lshrrev_b32 v{G}, 4, v1")
    for tb in range(2):
        a(f"v_lshlrev_b32 v9, 6, v{TOK[tb]}")
        for q in range(4): a(f"buffer_load_dwordx4 v[{ST+16*tb+4*q}:{ST+16*tb+4*q+3}], v9, s[24:27], 0 offen offset:{16*q}")
    a("s_mul_i32 s36, s51, 448"); a("v_lshlrev_b32 v9, 2, v0"); a("v_add_u32 v240, s36, v9")
    a(f"v_add_u32 v241, {(1728-112)*4}, v240"); a("v_cmp_gt_u32 vcc, 112, v0"); a("s_nop 1"); a("v_cndmask_b32 v240, v241, v240, vcc")
    a("buffer_load_dword v241, v240, s[28:31], 0 offen"); a(f"v_add_u32 v240, {CSO}, v9")
    nv=g.rdaddr(10); nv=(nv+3)//4*4
    ACC=nv; nv+=112
    def ad():
        a("s_waitcnt vmcnt(0)")
        a("ds_write_b32 v240, v241")
        for tb in range(2):
            b=ST+16*tb; T=232
            a(f"v_add_f32 v{T}, v{b}, v{b+2}")
            for i in range(2,8): a(f"v_add_f32 v{T}, v{T}, v{b+2*i}")
            a(f"v_mul_f32 v{MEAN[tb]}, {F(1/640):#x}, v{T}")
            a(f"v_add_f32 v{T+1}, v{b+1}, v{b+3}")
            for i in range(2,8): a(f"v_add_f32 v{T+1}, v{T+1}, v{b+2*i+1}")
            a(f"v_mov_b32 v{T+3}, {F(1/80):#x}"); a(f"v_mov_b32 v{T+4}, {F(80.0):#x}")
            for i in range(8):
                a(f"v_fma_f32 v{T+2}, v{b+2*i}, v{T+3}, -v{MEAN[tb]}"); a(f"v_mul_f32 v{T+2}, v{T+2}, v{T+2}"); a(f"v_fmac_f32 v{T+1}, v{T+2}, v{T+4}")
            a(f"v_mul_f32 v{T+1}, {F(1/640):#x}, v{T+1}"); a(f"v_add_f32 v{T+1}, {F(1e-5):#x}, v{T+1}")
            a(f"v_rcp_f32 v{RS2[tb]}, v{T+1}")
    g.after_dma=ad
    g.main(nv,lambda tb,j:f"v[{ACC+(tb*14+j)*4}:{ACC+(tb*14+j)*4+3}]")
    assert g.nfr<=232 and nv<=ST, (g.nfr,nv)
    T=nv; OFF=[T,T+1]; CA=T+2; C=T+4
    a("s_lshr_b32 s36, s33, 4"); a("s_lshl_b32 s37, s32, 1"); a("s_add_u32 s36, s36, s37"); a("s_mul_i32 s36, s36, 55296")
    a(f"v_lshl_add_u32 v{OFF[0]}, v1, 4, s36"); a(f"v_add_u32 v{OFF[1]}, 55296, v{OFF[0]}")
    a("s_mul_i32 s36, s51, 7")
    for j in range(7):
        a(f"s_add_u32 s37, s36, {j}"); a("s_lshr_b32 s38, s37, 1"); a("s_lshl_b32 s38, s38, 10"); a("s_and_b32 s37, s37, 1"); a("s_lshl_b32 s37, s37, 3"); a(f"s_add_u32 s{56+j}, s38, s37")
    a(f"v_lshlrev_b32 v{CA}, 4, v{G}"); a(f"v_add_u32 v{CA}, {CSO}, v{CA}")
    for j in range(7):
        a(f"ds_read_b128 v[{C+8*j}:{C+8*j+3}], v{CA} offset:{64*j}"); a(f"ds_read_b128 v[{C+8*j+4}:{C+8*j+7}], v{CA} offset:{448+64*j}")
    assert C+56<=256
    a("s_nop 7")
    for j in range(7):
        if j==3: a("s_cmp_eq_u32 s51, 15"); a(f"s_cbranch_scc1 L_{name}_end")
        a(f"s_waitcnt lgkmcnt({12-2*j})")
        for tb in range(2):
            ag=ACC+(tb*14+j)*4; au=ACC+(tb*14+7+j)*4
            for r in range(4):
                a(f"v_fma_f32 v{ag+r}, -v{MEAN[tb]}, v{C+8*j+r}, v{ag+r}"); a(f"v_fma_f32 v{au+r}, -v{MEAN[tb]}, v{C+8*j+4+r}, v{au+r}")
            for r in range(4):
                a(f"v_mul_f32 v{ag+r}, v{ag+r}, v{au+r}")
            for r in range(4): a(f"v_mul_f32 v{ag+r}, v{ag+r}, v{RS2[tb]}")
            a(f"v_cvt_pk_bf16_f32 v{au}, v{ag}, v{ag+1}"); a(f"v_cvt_pk_bf16_f32 v{au+1}, v{ag+2}, v{ag+3}")
            a(f"buffer_store_dwordx2 v[{au}:{au+1}], v{OFF[tb]}, s[20:23], s{56+j} offen"+SC4)
    a(f"s_branch L_{name}_end")
    g.producer(name,DEPTH[name])
    tail(a,name,256)
    return a.text(), g.lds+1024
def build(kernels):
    hdr=open("cdna_kernels/"+NAME+".s.ref").read().split("; Override launch")[0]
    body=""; lines=""
    for fn,grid,blk in kernels:
        t,lds=fn(); nm=fn.__name__+"_kernel"
        lines+=f"; @launch kernel={nm} grid=({grid},1,1) block=({blk},1,1) lds={lds}\n"
        body+=t+"\n"
    return hdr+lines+'.amdgcn_target "amdgcn-amd-amdhsa--gfx950"\n.text\n'+body
if __name__=="__main__":
    ks=[(k1,256,512)]
    for nm,gr,bl in (("k2",256,512),("k3",256,512),("k4",256,512),("k5",256,512)):
        if nm in globals(): ks.append((globals()[nm],gr,bl))
    out=sys.argv[1] if len(sys.argv)>1 else "cdna_kernels/"+NAME+".s"
    open(out,"w").write(build(ks))
```

```python
import sys
import os
PROF=bool(os.environ.get("PROF"))
MARKS=(96,97,98,99)
def mark(a,i):
    if PROF: a(f"s_memtime s[100:101]"); a("s_waitcnt lgkmcnt(0)"); a(f"s_mov_b32 s{96+i}, s100")
NAME="sequential_preLN__grouped_kv_mqa__glu_gated_bilinear__prompt"
WS_Q=0x000000; WS_KF=0x300000; WS_VF=0x340000; WS_KM=0x380000; WS_CS=0x390000
WS_O=0x400000; WS_H=0x700000; WS_ST=0xA00000; WS_HH=0xB00000
ACT_BYTES=2048*640*2
class A:
    def __init__(s): s.L=[]; s.n=0
    def __call__(s,x): s.L.append("    "+x)
    def lab(s,x): s.L.append(x+":")
    cnt=0
    def uniq(s,p): A.cnt+=1; return f"L_{p}_{A.cnt}"
    def text(s): return "\n".join(s.L)+"\n"
def srd(a,d,slot,off,nbytes,tmp=None):
    if off:
        a(f"s_add_u32 s{d}, s{slot}, {off:#x}"); a(f"s_addc_u32 s{d+1}, s{slot+1}, 0")
    else:
        a(f"s_mov_b32 s{d}, s{slot}"); a(f"s_mov_b32 s{d+1}, s{slot+1}")
    a(f"s_mov_b32 s{d+2}, {nbytes:#x}"); a(f"s_mov_b32 s{d+3}, 0x20000")
def head(a,name,nwg):
    a.L.append(f".globl {name}\n.p2align 8\n.type {name},@function\n{name}:")
    a(f"s_cmp_ge_u32 s2, {nwg}"); a(f"s_cbranch_scc1 L_{name}_end")
    a("s_load_dwordx16 s[64:79], s[0:1], 0"); a("s_load_dwordx8 s[80:87], s[0:1], 64")
    if PROF: a("s_memtime s[88:89]"); a("s_memrealtime s[90:91]")
    a("v_and_b32 v1, 63, v0"); a("v_lshrrev_b32 v2, 6, v0"); a("s_nop 0"); a("v_readfirstlane_b32 s32, v2"); a("s_nop 3"); a("s_mov_b32 s53, s32")
    a("s_waitcnt lgkmcnt(0)")
    mark(a,0)
def tail(a,name,nv,nacc=0,ns=102):
    a.lab(f"L_{name}_end")
    if PROF:
        kidx=int(name[1])
        a("s_mov_b64 exec, -1"); a("s_waitcnt vmcnt(0) lgkmcnt(0)")
        a(f"s_cmp_ge_u32 s2, 256"); a(f"s_cbranch_scc1 L_{name}_e2")
        a("s_memtime s[92:93]"); a("s_memrealtime s[94:95]"); a("s_waitcnt lgkmcnt(0)")
        for i,(r) in enumerate((88,90,92,94)+tuple(MARKS)): a(f"v_mov_b32 v{4+i}, s{r}")
        a(f"s_lshl_b32 s88, s2, 3"); a("s_add_u32 s88, s88, s53"); a("s_lshl_b32 s88, s88, 5"); a(f"s_add_u32 s88, s88, {0x1A00000+kidx*0x10000:#x}")
        a("v_mov_b32 v2, s88"); srd(a,4,PWS,0,0x2000000)
        a("v_cmp_eq_u32 vcc, 0, v1"); a("s_and_saveexec_b64 s[40:41], vcc")
        a("buffer_store_dwordx4 v[4:7], v2, s[4:7], 0 offen"); a("buffer_store_dwordx4 v[8:11], v2, s[4:7], 0 offen offset:16")
        a.lab(f"L_{name}_e2")
    a("s_endpgm")
    acc=(nv+3)//4*4
    a.L.append(f""".section .rodata,"a"
.p2align 6
.amdhsa_kernel {name}
  .amdhsa_next_free_vgpr {acc+nacc if nacc else nv}
  .amdhsa_next_free_sgpr {ns}
  .amdhsa_accum_offset {acc}
  .amdhsa_group_segment_fixed_size 0
  .amdhsa_kernarg_size 96
  .amdhsa_user_sgpr_count 2
  .amdhsa_user_sgpr_kernarg_segment_ptr 1
  .amdhsa_system_sgpr_workgroup_id_x 1
.end_amdhsa_kernel
.text""")
SC=os.environ.get('SC',''); SC4=os.environ.get('SC4','')
WT_DEFAULT='4'
PACK=not os.environ.get('NOPACK')
WS_PO=0x1200000; WS_PD=0x1300000; WS_PG=0x1520000; WS_PU=0x1750000
ROT=lambda x: x if os.environ.get("ROT") else (0,0)
BS={"k1_kernel":int(os.environ.get("B1",1)),"k3_kernel":int(os.environ.get("B3",1)),"k5_kernel":int(os.environ.get("B5",1))}
DEPTH={"k1_kernel":int(os.environ.get("D1",4)),"k3_kernel":int(os.environ.get("D3",4)),"k5_kernel":int(os.environ.get("D5",6)),"k4_kernel":int(os.environ.get("D4",2))}
PX,PWQ,PWK,PWV,PWO,PWG,PWU,PWD,POUT,PWS=64,66,68,70,72,76,78,80,82,86
def magic(n,maxq):
    m=(65536+n-1)//n
    assert all((q*m)>>16==q//n for q in range(maxq)),n
    return m
class Gemm:
    def __init__(g,a,BM,K,pitchA,regions,NS,PD,free,extra=None,accbase=None,jb=4,PX=0):
        g.PX=PX
        g.a=a;g.BM=BM;g.K=K;g.pitchA=pitchA;g.regions=regions;g.NS=NS;g.PD=PD;g.free=free;g.jb=jb;g.bs=1
        g.TB=BM//64; g.nst=K//64; g.extra=extra or []
        g.tiles=[]
        for ri,(nc,pw,nt) in enumerate(regions):
            for t in range(nt): g.tiles.append((ri,t))
        g.NT=len(g.tiles)
        g.roff=[]; o=BM*128 if not PX else 0
        for (nc,pw,nt) in regions: g.roff.append(o); o+=64*nc*16
        g.ssz=o
        assert g.ssz*NS<=160*1024-64, g.ssz*NS
        g.lds=g.ssz*NS
    def slots(g):
        sl=[]
        nA=g.BM//8 if not g.PX else 0
        for j in range(nA//4): sl.append([('A',4*j+w) for w in range(4)])
        left=[]
        for ri,(nc,pw,nt) in enumerate(g.regions):
            for j in range(nc//4): sl.append([(ri,4*j+w) for w in range(4)])
            left+= [(ri,i) for i in range(nc//4*4,nc)]
        assert len(left)<=4
        if left: sl.append(left+[None]*(4-len(left)))
        return sl
    def prologue(g,v0):
        a=g.a; sl=g.slots(); g.sl=sl; g.voff=[v0+i for i in range(len(sl))]
        nv=v0+len(sl)
        T1,T2,T3=nv+20,nv+21,nv+22
        g.pmax=T3+1
        for j,s in enumerate(sl):
            kinds=set(x[0] for x in s if x)
            v=g.voff[j]
            if kinds=={'A'}:
                a(f"s_lshl_b32 s36, s32, 3"); a(f"s_add_u32 s36, s36, {32*j}")
                a(f"v_lshrrev_b32 v{T1}, 3, v1"); a(f"v_add_u32 v{T1}, s36, v{T1}")
                a(f"v_lshrrev_b32 v{T2}, 1, v{T1}"); a(f"v_xor_b32 v{T2}, v{T2}, v1"); a(f"v_and_b32 v{T2}, 7, v{T2}")
                a(f"v_add_u32 v{T1}, s33, v{T1}"); a(f"s_mov_b32 s36, {g.pitchA}")
                a(f"v_mul_lo_u32 v{T1}, v{T1}, s36"); a(f"v_lshl_add_u32 v{v}, v{T2}, 4, v{T1}")
            else:
                first=True
                for w,x in enumerate(s):
                    if x is None: continue
                    ri,i=x; nc,pw,nt=g.regions[ri]
                    vals=(i*64,magic(nc,nc*64),nc,pw)
                    if first:
                        for r,val in zip((37,38,39,41),vals): a(f"s_mov_b32 s{r}, {val}")
                        a(f"s_mov_b32 s42, s{34+ri}"); first=False; prev=(vals,ri)
                    elif (vals,ri)!=prev:
                        a(f"s_cmp_ge_u32 s32, {w}")
                        for r,val,pv in zip((37,38,39,41),vals,prev[0]):
                            if val!=pv: a(f"s_cselect_b32 s{r}, {val}, s{r}")
                        if ri!=prev[1]: a(f"s_cselect_b32 s42, s{34+ri}, s42")
                        prev=(vals,ri)
                a(f"v_add_u32 v{T1}, s37, v1")
                a(f"v_mul_lo_u32 v{T2}, v{T1}, s38"); a(f"v_lshrrev_b32 v{T2}, 16, v{T2}")
                a(f"v_mul_lo_u32 v{T3}, v{T2}, s39"); a(f"v_sub_u32 v{T1}, v{T1}, v{T3}")
                lo,msk=(8,0xe7) if g.PX else (4,0xf3)
                a(f"v_and_b32 v{T3}, {lo}, v{T2}"); a(f"v_lshlrev_b32 v{T3}, 1, v{T3}")
                a(f"v_and_b32 v{v}, {2*lo}, v{T2}"); a(f"v_lshrrev_b32 v{v}, 1, v{v}"); a(f"v_or_b32 v{T3}, v{T3}, v{v}")
                a(f"v_and_b32 v{T2}, {msk:#x}, v{T2}"); a(f"v_or_b32 v{T2}, v{T2}, v{T3}")
                a(f"v_mul_lo_u32 v{T2}, v{T2}, s41"); a(f"v_lshl_add_u32 v{T2}, v{T1}, 4, v{T2}")
                a(f"v_add_u32 v{v}, s42, v{T2}")
        last=sl[-1]; g.hasleft=any(x is None for x in last) or len(set(x[0] for x in last if x))>1
        if g.hasleft:
            regs=[x for x in last]
            r0=regs[0][0]
            for q in range(4): a(f"s_mov_b32 s{16+q}, s{8+4*r0+q}")
            a(f"s_mov_b32 s44, {g.roff[r0]+regs[0][1]*1024}"); a(f"s_mov_b32 s45, {64*g.regions[r0][1]}")
            for w in range(1,4):
                if regs[w] is None: continue
                ri,i=regs[w]
                a(f"s_cmp_ge_u32 s32, {w}")
                if ri!=r0:
                    for q in range(3): a(f"s_cselect_b32 s{16+q}, s{8+4*ri+q}, s{16+q}")
                    a(f"s_cselect_b32 s45, {64*g.regions[ri][1]}, s45")
                a(f"s_cselect_b32 s44, {g.roff[ri]+i*1024}, s44")
            g.nleft=sum(1 for x in last if x)
        a("s_lshl_b32 s46, s32, 10")
    def producer(g,name,D):
        a=g.a
        a.lab(f"L_{name}_prod"); a("s_and_b32 s32, s32, 3")
        if os.environ.get("PRIO"): a("s_setprio 3")
        ra,rb=g.rot
        a(f"s_mul_i32 s54, s55, {ra}"); a(f"s_mul_i32 s57, s56, {rb}"); a("s_add_u32 s54, s54, s57")
        a(f"s_sub_u32 s57, s54, {g.nst}"); a(f"s_cmp_ge_u32 s54, {g.nst}"); a("s_cselect_b32 s54, s57, s54")
        a("s_mov_b32 s45, 0")
        g.prologue(2)
        mark(a,1)
        classes=[True]
        if g.hasleft and g.nleft<4:
            classes=[True,False]; a(f"s_cmp_ge_u32 s32, {g.nleft}"); a(f"s_cbranch_scc1 L_{name}_prod1")
        for cls in classes:
            if not cls: a.lab(f"L_{name}_prod1")
            issued=[]
            def upto(lim):
                while len(issued)<min(lim,g.nst): issued.append(g.dma(len(issued),cls))
            def tick(acc):
                if PROF:
                    a("s_memtime s[100:101]"); a("s_waitcnt lgkmcnt(0)"); a("s_sub_u32 s58, s100, s59"); a("s_mov_b32 s59, s100")
                    if acc is not None: a(f"s_add_u32 s{acc}, s{acc}, s58")
            if PROF:
                for r in (97,98,99): a(f"s_mov_b32 s{r}, s88")
            tick(None)
            upto(D)
            tick(99)
            bs=g.bs
            for st in range(0,g.nst,bs):
                last=min(st+bs-1,g.nst-1)
                assert len(issued)>last
                a(f"s_waitcnt vmcnt({min(63,sum(issued[last+1:]))})"); tick(97); a("s_barrier"); tick(98)
                lim=max(g.NS,(st-1+g.NS if g.free=='cur' else st-2+g.NS)+1)
                upto(min(lim,len(issued)+bs)); tick(99)
            a(f"s_branch L_{name}_end")
    def rdaddr(g,nv):
        a=g.a
        T1,T2,T3=nv+20,nv+21,nv+22
        g.nwin=(g.lds+65535)//65536
        g.vx=[[nv+ks*3+w for w in range(3)] for ks in range(2)]; nv+=6
        g.vw=[[nv+ri*3+w for w in range(3)] for ri in range(len(g.regions))]; nv+=6
        if g.PX:
            fs=g.nst*2*1024
            a(f"s_lshr_b32 s36, s33, 4"); a(f"s_mul_i32 s37, s32, {g.TB}"); a("s_add_u32 s36, s36, s37"); a(f"s_mul_i32 s36, s36, {fs}")
            a(f"v_lshlrev_b32 v{T1}, 4, v1"); a(f"v_add_u32 v{g.vx[0][0]}, s36, v{T1}"); a(f"v_add_u32 v{g.vx[0][1]}, {fs}, v{g.vx[0][0]}")
        else:
            a(f"v_and_b32 v{T1}, 15, v1"); a(f"v_lshrrev_b32 v{T2}, 4, v1"); a(f"v_lshrrev_b32 v{T3}, 1, v{T1}")
            a(f"v_xor_b32 v{T2}, v{T2}, v{T3}"); a(f"v_lshlrev_b32 v{T2}, 4, v{T2}")
            a(f"s_mul_i32 s36, s32, {g.TB*16*128}"); a(f"v_lshl_add_u32 v{T2}, v{T1}, 7, v{T2}"); a(f"v_add_u32 v{g.vx[0][0]}, s36, v{T2}")
            a(f"v_xor_b32 v{g.vx[1][0]}, 64, v{g.vx[0][0]}")
            for ks in range(2):
                for w in range(1,3): a(f"v_add_u32 v{g.vx[ks][w]}, {65536*w}, v{g.vx[ks][0]}")
        a(f"v_lshrrev_b32 v{T1}, 5, v1"); a(f"v_lshlrev_b32 v{T1}, 4, v{T1}")
        a(f"v_bfe_u32 v{T2}, v1, 4, 1"); a(f"v_lshl_add_u32 v{T1}, v{T2}, 2, v{T1}")
        a(f"v_bfe_u32 v{T2}, v1, 2, 2"); a(f"v_add_u32 v{T1}, v{T1}, v{T2}")
        for ri,(nc,pw,nt) in enumerate(g.regions):
            a(f"v_mul_u32_u24 v{T2}, {nc*16}, v{T1}")
            a(f"v_and_b32 v{T3}, {3 if nc>1 else 1}, v1"); a(f"v_lshl_add_u32 v{g.vw[ri][0]}, v{T3}, 3, v{T2}")
            if os.environ.get("EXP"): a(f"v_lshlrev_b32 v{g.vw[ri][0]}, 4, v1")
            for w in range(1,3): a(f"v_add_u32 v{g.vw[ri][w]}, {65536*w}, v{g.vw[ri][0]}")
        return nv
    def dma(g,st,cls):
        a=g.a; base=(st%g.NS)*g.ssz; n=0
        a("s_lshl_b32 s47, s54, 7")
        for ri,(nc,pw,nt) in enumerate(g.regions): a(f"s_mul_i32 s{48+ri}, s54, {64*pw}")
        a("s_mul_i32 s50, s45, s54")
        a("s_add_u32 s54, s54, 1"); a(f"s_cmp_eq_u32 s54, {g.nst}"); a("s_cselect_b32 s54, 0, s54")
        for j,s in enumerate(g.sl):
            v=g.voff[j]
            if j==len(g.sl)-1 and g.hasleft:
                if not cls: continue
                a(f"s_add_u32 m0, s44, {base}"); a("s_nop 0")
                a(f"buffer_load_dwordx4 v{v}, s[16:19], s50 offen lds"); n+=1
            else:
                k,i=s[0]
                if k=='A': off=i*1024; sr=4; so=47
                else: off=g.roff[k]+i*1024; sr=8+4*k; so=48+k
                a(f"s_add_u32 m0, s46, {base+off}"); a("s_nop 0")
                a(f"buffer_load_dwordx4 v{v}, s[{sr}:{sr+3}], s{so} offen lds"); n+=1
        return n
    def ldsaddr(g,regs,off):
        return f"v{regs[off>>16]} offset:{off&65535}"
    def main(g,fr0,acc):
        a=g.a; NT=g.NT;TB=g.TB;PD=g.PD; nsteps=g.nst*2
        setsz=NT*4
        def wf(i,j): b=fr0+(i%PD)*setsz+j*4; return b
        NX=(g.PX+1) if g.PX else (PD+1)
        def xf(i,tb): b=fr0+PD*setsz+(i%NX)*TB*4+tb*4; return b
        g.nfr=fr0+PD*setsz+NX*TB*4
        def ld_x(i):
            a(f"s_mov_b32 s47, {i*1024}")
            for tb in range(TB): a(f"buffer_load_dwordx4 v[{xf(i,tb)}:{xf(i,tb)+3}], v{g.vx[0][tb]}, s[4:7], s47 offen")
        q=[]
        nt_=lambda ri: g.regions[ri][2]
        def rd_w(i,j):
            st,ks=divmod(i,2); ri,t=g.tiles[j]; nc=g.regions[ri][0]; base=(st%g.NS)*g.ssz+g.roff[ri]
            if os.environ.get("EXP"):
                a(f"ds_read_b128 v[{wf(i,j)}:{wf(i,j)+3}], {g.ldsaddr(g.vw[ri],base+(ks*nt_(ri)+t)*1024)}"); q.append((i,'w',j)); return
            for h in range(2):
                off=base+(32*ks+8*h)*nc*16+t*32
                a(f"ds_read_b64_tr_b16 v[{wf(i,j)+2*h}:{wf(i,j)+2*h+1}], {g.ldsaddr(g.vw[ri],off)}"); q.append((i,'w',j))
        def rd_x(i):
            st,ks=divmod(i,2); base=(st%g.NS)*g.ssz
            if g.PX: return
            for tb in range(TB):
                a(f"ds_read_b128 v[{xf(i,tb)}:{xf(i,tb)+3}], {g.ldsaddr(g.vx[ks],base+tb*2048)}"); q.append((i,'x',tb))
        def need(tags):
            idx=max([n for n,t in enumerate(q) if t in tags],default=-1)
            if idx>=0:
                rem=len(q)-1-idx
                a(f"s_waitcnt lgkmcnt({min(rem,15)})")
                if rem<=15: del q[:idx+1]
                else: del q[:len(q)-15]
        def sync(st):
            if g.free=='cur': a(f"s_waitcnt lgkmcnt(0)"); q.clear()
            a("s_barrier")
        mark(a,1)
        g.after_dma()
        for i in range(min(g.PX,nsteps)): ld_x(i)
        mark(a,2)
        synced=set()
        def ensure(i):
            st=i//2
            if st not in synced:
                if st%g.bs==0: sync(st)
                synced.add(st)
        for i in range(PD):
            ensure(i); rd_x(i)
            for j in range(NT): rd_w(i,j)
        for i in range(nsteps):
            nx=i+PD; defer=[]; xdone=False
            newst = nx<nsteps and (nx//2) not in synced
            if g.PX:
                a(f"s_waitcnt vmcnt({(min(nsteps,i+g.PX)-(i+1))*TB})")
                if i+g.PX<nsteps: ld_x(i+g.PX)
            for j in range(NT):
                need({(i,'w',j)}|{(i,'x',tb) for tb in range(TB)})
                for tb in range(TB):
                    c=acc(tb,j); src=c if i>0 else "0"
                    a(f"v_mfma_f32_16x16x32_bf16 {c}, v[{wf(i,j)}:{wf(i,j)+3}], v[{xf(i,tb)}:{xf(i,tb)+3}], {src}")
                for e in g.extra: e(i,j,wf(i,j),[xf(i,tb) for tb in range(TB)])
                if nx<nsteps:
                    if newst and g.free=='cur' and j<g.jb: defer.append(j); continue
                    if newst and (nx//2) not in synced:
                        ensure(nx)
                        for d in defer: rd_w(nx,d)
                        defer=[]
                    if not xdone: rd_x(nx); xdone=True
                    rd_w(nx,j)
        mark(a,3)
    def after_dma(g): pass

F=lambda x: __import__("struct").unpack("<I",__import__("struct").pack("<f",x))[0]
import math
def tile_map_32x8(a):
    a("s_and_b32 s36, s2, 7"); a("s_lshr_b32 s37, s2, 3"); a("s_and_b32 s38, s37, 3")
    a("s_lshl_b32 s36, s36, 2"); a("s_add_u32 s36, s36, s38"); a("s_lshl_b32 s33, s36, 6"); a("s_lshr_b32 s51, s37, 2")
    a("s_mov_b32 s52, s36")
    a("s_mov_b32 s55, s51"); a("s_mov_b32 s56, s38")
def rbf(a,r):
    a(f"v_cvt_pk_bf16_f32 v{r}, v{r}, v{r}"); a(f"v_lshlrev_b32 v{r}, 16, v{r}")
def cvt_store8(a,v0,v1,v2,v3,t0,off,srd_,imm=0):
    a(f"v_cvt_pk_bf16_f32 v{t0}, v{v0}, v{v1}"); a(f"v_cvt_pk_bf16_f32 v{t0+1}, v{v2}, v{v3}")
    a(f"buffer_store_dwordx2 v[{t0}:{t0+1}], v{off}, s[{srd_}:{srd_+3}], 0 offen offset:{imm}")
def k1():
    a=A(); name="k1_kernel"; head(a,name,256); tile_map_32x8(a)
    srd(a,4,PX,0,ACT_BYTES); srd(a,8,PWQ,0,640*1280)
    a("s_cmp_lt_u32 s51, 4"); a(f"s_cselect_b32 s12, s{PWK}, s{PWV}"); a(f"s_cselect_b32 s13, s{PWK+1}, s{PWV+1}")
    a("s_mov_b32 s14, 25600"); a("s_mov_b32 s15, 0x20000")
    srd(a,20,PWS,0,0x400000)
    a("s_mul_i32 s34, s51, 160"); a("s_and_b32 s35, s51, 3"); a("s_lshl_b32 s35, s35, 3")
    g=Gemm(a,64,640,1280,[(10,1280,5),(1,40,1)],NS=8,PD=2,free='prev'); g.rot=((0,0) if os.environ.get('R1')=='0' else (1,3)); g.bs=BS[name]
    a("s_cmp_ge_u32 s32, 4"); a(f"s_cbranch_scc1 L_{name}_prod")
    nv=g.rdaddr(2)
    ONES=nv; nv+=4; nv=(nv+3)//4*4; ONES=nv-4 if False else nv; nv+=4
    for r in range(4): a(f"v_mov_b32 v{ONES+r}, 0x3f803f80")
    ACC=nv; nv+=24; CS=nv; nv+=24; SM=nv; nv+=4; SQ=nv; nv+=4
    KMO=g.lds
    a(f"v_mov_b32 v{nv}, 0"); a(f"v_lshlrev_b32 v{nv+1}, 2, v1"); a(f"ds_write_b32 v{nv+1}, v{nv} offset:0")
    a.L=a.L[:-3]
    a(f"v_mov_b32 v{nv}, 0"); a(f"v_lshlrev_b32 v{nv+1}, 2, v1"); a(f"v_add_u32 v{nv+1}, {KMO}, v{nv+1}"); a(f"ds_write_b32 v{nv+1}, v{nv}")
    def ex(i,j,w,x):
        src=lambda b: f"v[{b}:{b+3}]" if i>0 else "0"
        a(f"v_mfma_f32_16x16x32_bf16 v[{CS+4*j}:{CS+4*j+3}], v[{w}:{w+3}], v[{ONES}:{ONES+3}], {src(CS+4*j)}")
        if j==0:
            a(f"v_mfma_f32_16x16x32_bf16 v[{SM}:{SM+3}], v[{ONES}:{ONES+3}], v[{x[0]}:{x[0]+3}], {src(SM)}")
        if j==1:
            a(f"v_mfma_f32_16x16x32_bf16 v[{SQ}:{SQ+3}], v[{x[0]}:{x[0]+3}], v[{x[0]}:{x[0]+3}], {src(SQ)}")
    g.extra=[ex]
    g.main(nv,lambda tb,j:f"v[{ACC+4*j}:{ACC+4*j+3}]")
    T=g.nfr; nvmax=T+16
    a("s_nop 7"); a("s_nop 7")
    a(f"v_and_b32 v{T}, 15, v1"); a(f"v_and_b32 v{T+1}, 3, v1")
    a(f"v_cmp_eq_u32 vcc, 1, v{T+1}"); a("s_nop 1"); a(f"v_cndmask_b32 v{T+2}, v{SQ}, v{SQ+1}, vcc")
    a(f"v_cmp_eq_u32 vcc, 2, v{T+1}"); a("s_nop 1"); a(f"v_cndmask_b32 v{T+2}, v{T+2}, v{SQ+2}, vcc")
    a(f"v_cmp_eq_u32 vcc, 3, v{T+1}"); a("s_nop 1"); a(f"v_cndmask_b32 v{T+2}, v{T+2}, v{SQ+3}, vcc")
    a(f"v_lshrrev_b32 v{T+3}, 2, v{T}"); a(f"v_lshl_add_u32 v{T+3}, v{T+3}, 4, v{T}"); a(f"v_lshlrev_b32 v{T+3}, 2, v{T+3}")
    a(f"ds_bpermute_b32 v{T+2}, v{T+3}, v{T+2}")
    MEAN,RS=T+4,T+5
    a(f"v_mul_f32 v{MEAN}, {F(1/640):#x}, v{SM}"); a("s_waitcnt lgkmcnt(0)")
    a(f"v_mul_f32 v{T+2}, {F(1/640):#x}, v{T+2}"); a(f"v_fma_f32 v{T+2}, -v{MEAN}, v{MEAN}, v{T+2}")
    a(f"v_max_f32 v{T+2}, 0, v{T+2}"); rbf(a,T+2); a(f"v_add_f32 v{T+2}, {F(1e-5):#x}, v{T+2}"); rbf(a,T+2)
    a(f"v_sqrt_f32 v{T+2}, v{T+2}"); rbf(a,MEAN); rbf(a,T+2); a(f"v_rcp_f32 v{RS}, v{T+2}"); a("s_nop 0")
    a(f"v_mul_f32 v{T+6}, {F(20**-0.5*math.log2(math.e)):#x}, v{RS}")
    TOK=T+7; a(f"s_lshl_b32 s36, s32, 4"); a("s_add_u32 s36, s36, s33"); a(f"v_add_u32 v{TOK}, s36, v{T}")
    G=T+8; a(f"v_lshrrev_b32 v{G}, 4, v1")
    a(f"v_mul_u32_u24 v{T+9}, 1280, v{TOK}"); a(f"v_lshl_add_u32 v{T+9}, v{G}, 3, v{T+9}"); a(f"v_add_u32 v{T+9}, s34, v{T+9}")
    for j in range(6):
        for r in range(4):
            a(f"v_fma_f32 v{ACC+4*j+r}, -v{MEAN}, v{CS+4*j+r}, v{ACC+4*j+r}")
            a(f"v_mul_f32 v{ACC+4*j+r}, v{ACC+4*j+r}, v{T+6 if j<5 else RS}")
        if j<5: cvt_store8(a,ACC+4*j,ACC+4*j+1,ACC+4*j+2,ACC+4*j+3,T+10+2*(j&1),T+9,20,imm=32*j)
    Y=ACC+20; P=T+14
    a(f"v_cvt_pk_bf16_f32 v{P}, v{Y}, v{Y+1}"); a(f"v_cvt_pk_bf16_f32 v{P+1}, v{Y+2}, v{Y+3}")
    D0=T+10; a("s_lshr_b32 s36, s35, 1"); a(f"v_lshl_add_u32 v{D0}, v{G}, 2, s36")
    TB_=T+11; a(f"v_lshrrev_b32 v{TB_}, 5, v{TOK}"); a(f"v_lshlrev_b32 v{TB_}, 11, v{TB_}")
    KAP=T+12; a(f"v_and_b32 v{KAP}, 31, v{TOK}")
    a("s_cmp_ge_u32 s51, 4"); a(f"s_cbranch_scc1 L_k1_v")
    AD=T+13
    a(f"v_lshrrev_b32 v{AD}, 3, v{D0}"); a(f"v_lshlrev_b32 v{AD}, 9, v{AD}")
    a(f"v_add_u32 v{AD}, v{AD}, v{TB_}"); a(f"v_lshl_add_u32 v{AD}, v{KAP}, 4, v{AD}")
    a(f"v_and_b32 v{T+9}, 7, v{D0}"); a(f"v_lshl_add_u32 v{AD}, v{T+9}, 1, v{AD}"); a(f"v_add_u32 v{AD}, {WS_KF:#x}, v{AD}")
    a(f"v_cmp_gt_u32 vcc, 2, v{G}"); a("s_and_saveexec_b64 s[40:41], vcc")
    a(f"buffer_store_dwordx2 v[{P}:{P+1}], v{AD}, s[20:23], 0 offen")
    a("s_mov_b64 exec, s[40:41]")
    for r in range(4):
        a(f"v_and_b32 v{Y+r}, 0x7fffffff, v{Y+r}")
    for rot in (8,4,2,1):
        a("s_nop 1")
        for r in range(4): a(f"v_max_f32_dpp v{Y+r}, v{Y+r}, v{Y+r} row_ror:{rot} row_mask:0xf bank_mask:0xf")
    a(f"v_lshlrev_b32 v{T+9}, 2, v{D0}"); a(f"v_add_u32 v{T+9}, {KMO}, v{T+9}")
    a(f"v_cmp_gt_u32 vcc, 2, v{G}"); a("s_and_saveexec_b64 s[40:41], vcc")
    for r in range(4): a(f"ds_max_f32 v{T+9}, v{Y+r} offset:{4*r}")
    a("s_mov_b64 exec, s[40:41]")
    a("s_cmp_lg_u32 s51, 3"); a("s_cbranch_scc1 L_k1_kskip")
    a(f"v_mov_b32 v{P}, 0x3f803f80"); a(f"v_mov_b32 v{P+1}, 0x00003f80")
    a(f"v_cmp_eq_u32 vcc, 1, v{G}"); a("s_and_saveexec_b64 s[40:41], vcc")
    a(f"buffer_store_dwordx2 v[{P}:{P+1}], v{AD}, s[20:23], 0 offen offset:8")
    a("s_mov_b64 exec, s[40:41]")
    Z=(T+16+3)//4*4; nvmax=Z+4
    for r in range(4): a(f"v_mov_b32 v{Z+r}, 0")
    a(f"v_lshl_add_u32 v{AD}, v{KAP}, 4, v{TB_}"); a(f"v_add_u32 v{AD}, {WS_KF+1536:#x}, v{AD}")
    a(f"v_cmp_eq_u32 vcc, 2, v{G}"); a("s_and_saveexec_b64 s[40:41], vcc")
    a(f"buffer_store_dwordx4 v[{Z}:{Z+3}], v{AD}, s[20:23], 0 offen")
    a("s_mov_b64 exec, s[40:41]")
    a.lab("L_k1_kskip")
    a("s_waitcnt lgkmcnt(0)"); a("s_barrier")
    a("s_cmp_lg_u32 s32, 0"); a(f"s_cbranch_scc1 L_{name}_end")
    a("s_lshr_b32 s36, s35, 1"); a(f"v_add_u32 v{T}, s36, v1"); a(f"v_lshlrev_b32 v{T}, 2, v{T}")
    a(f"v_add_u32 v{T+1}, {KMO}, v{T}"); a(f"ds_read_b32 v{T+2}, v{T+1}")
    a("s_lshl_b32 s36, s52, 7"); a(f"s_add_u32 s36, s36, {WS_KM:#x}"); a(f"v_add_u32 v{T}, s36, v{T}")
    a("v_cmp_gt_u32 vcc, 8, v1"); a("s_and_saveexec_b64 s[40:41], vcc"); a("s_waitcnt lgkmcnt(0)")
    a(f"buffer_store_dword v{T+2}, v{T}, s[20:23], 0 offen")
    a(f"s_branch L_{name}_end")
    a.lab("L_k1_v")
    AD=T+13
    a(f"v_lshrrev_b32 v{AD}, 4, v{KAP}"); a(f"v_lshl_add_u32 v{AD}, v{AD}, 10, v{TB_}")
    a(f"v_bfe_u32 v{T+9}, v{KAP}, 2, 1"); a(f"v_lshl_add_u32 v{AD}, v{T+9}, 9, v{AD}")
    a(f"v_and_b32 v{T+9}, 3, v{KAP}"); a(f"v_lshl_add_u32 v{AD}, v{T+9}, 1, v{AD}")
    a(f"v_bfe_u32 v{T+9}, v{KAP}, 3, 1"); a(f"v_lshl_add_u32 v{AD}, v{T+9}, 3, v{AD}")
    a(f"v_lshl_add_u32 v{AD}, v{D0}, 4, v{AD}"); a(f"v_add_u32 v{AD}, {WS_VF:#x}, v{AD}")
    a(f"v_cmp_gt_u32 vcc, 2, v{G}"); a("s_and_saveexec_b64 s[40:41], vcc")
    a(f"buffer_store_short v{P}, v{AD}, s[20:23], 0 offen"); a(f"buffer_store_short_d16_hi v{P}, v{AD}, s[20:23], 0 offen offset:16")
    a(f"buffer_store_short v{P+1}, v{AD}, s[20:23], 0 offen offset:32"); a(f"buffer_store_short_d16_hi v{P+1}, v{AD}, s[20:23], 0 offen offset:48")
    a("s_mov_b64 exec, s[40:41]")
    a("s_cmp_lg_u32 s51, 7"); a(f"s_cbranch_scc1 L_{name}_end")
    a(f"v_mov_b32 v{P}, 0x3f80"); a(f"v_cmp_eq_u32 vcc, 2, v{G}"); a("s_and_saveexec_b64 s[40:41], vcc")
    a(f"buffer_store_short v{P}, v{AD}, s[20:23], 0 offen")
    a(f"s_branch L_{name}_end")
    g.producer(name,DEPTH[name])
    tail(a,name,max(nvmax,g.pmax))
    return a.text(), g.lds+128

def k2():
    a=A(); name="k2_kernel"; head(a,name,256)
    QA0,QA1,QB0,QB1=4,8,12,16
    KS=[20,28]; VS=[36,44]; SA,SB=52,68; PA,PB=84,92; OA,OB=100,116
    T=132; R0,R1=2,3
    FLAG=131072; CSL=131072+64; MXL=131072+256
    srd(a,4,PWS,WS_KF,0x60000); srd(a,8,PWS,0,0x800000)
    a("s_lshr_b32 s33, s2, 2"); a("s_and_b32 s34, s2, 3")
    a("s_and_b32 s35, s32, 3"); a("s_lshr_b32 s36, s32, 2")
    a("s_lshr_b32 s37, s32, 1"); a("s_and_b32 s38, s32, 1")
    a("s_lshl_b32 s40, s37, 14"); a("s_lshl_b32 s39, s38, 13"); a("s_add_u32 s40, s40, s39")
    a("s_and_b32 s41, s37, 1"); a("s_lshl_b32 s41, s41, 18")
    a("s_lshr_b32 s42, s37, 1"); a("s_lshl_b32 s42, s42, 16"); a("s_add_u32 s41, s41, s42"); a("s_add_u32 s41, s41, s39")
    a("v_lshlrev_b32 v132, 4, v1")
    VD=252; a(f"v_lshlrev_b32 v{VD}, 4, v1")
    def dma(st):
        for hf in range(2):
            a(f"s_add_u32 m0, s40, {(st&1)*65536+hf*4096}"); a(f"s_add_u32 s43, s41, {st*16384+hf*4096}")
            for i in range(4): a(f"buffer_load_dwordx4 v{VD}, s[4:7], s43 offen offset:{i*1024} lds")
    def dma2(st,k):
        hf,i0_=divmod(k,2)
        a(f"s_add_u32 m0, s40, {(st&1)*65536+hf*4096}"); a(f"s_add_u32 s43, s41, {st*16384+hf*4096}")
        for i in (2*i0_,2*i0_+1): a(f"buffer_load_dwordx4 v{VD}, s[4:7], s43 offen offset:{i*1024} lds")
    a("s_mov_b32 s60, 0")
    KM=T+4
    a(f"v_add_u32 v{T+1}, {WS_KM:#x}, v{VD}")
    for i in range(4): a(f"buffer_load_dwordx4 v[{KM+4*i}:{KM+4*i+3}], v{T+1}, s[8:11], 0 offen offset:{1024*i}")
    TOK=250; HI=251; QOFF=249
    a(f"v_and_b32 v{TOK}, 31, v1"); a("s_lshl_b32 s39, s33, 5"); a(f"v_add_u32 v{TOK}, s39, v{TOK}"); a(f"v_lshrrev_b32 v{HI}, 5, v1")
    a("s_lshl_b32 s39, s34, 3"); a("s_lshl_b32 s44, s35, 1"); a("s_add_u32 s39, s39, s44"); a("s_mul_i32 s39, s39, 40")
    a(f"v_mul_u32_u24 v{QOFF}, 1280, v{TOK}"); a(f"v_add_u32 v{QOFF}, s39, v{QOFF}")
    a(f"v_lshl_add_u32 v{T}, v{HI}, 4, v{QOFF}")
    a(f"buffer_load_dwordx4 v[{QA0}:{QA0+3}], v{T}, s[8:11], 0 offen"); a(f"buffer_load_dwordx2 v[{QA1}:{QA1+1}], v{QOFF}, s[8:11], 0 offen offset:32")
    a(f"buffer_load_dwordx4 v[{QB0}:{QB0+3}], v{T}, s[8:11], 0 offen offset:40"); a(f"buffer_load_dwordx2 v[{QB1}:{QB1+1}], v{QOFF}, s[8:11], 0 offen offset:72")
    a("s_cmp_eq_u32 s38, 0"); a("s_cbranch_scc0 L_k2_d0skip")
    dma(0)
    a.lab("L_k2_d0skip")
    a("s_lshl_b32 s39, s36, 15"); a(f"v_add_u32 v{R0}, s39, v{VD}"); a(f"v_add_u32 v{R1}, 65536, v{R0}")
    a(f"v_mov_b32 v{T}, 0"); a(f"v_lshlrev_b32 v{T+1}, 2, v1"); a(f"v_add_u32 v{T+1}, {FLAG}, v{T+1}"); a(f"ds_write_b32 v{T+1}, v{T}")
    CL=T+20; CA=T+36; PFA=T+37; PFB=T+38; PD_=T+40
    a("s_cmp_lt_u32 s2, 108"); a(f"s_cselect_b32 s12, s{PWG}, s{PWU}"); a(f"s_cselect_b32 s13, s{PWG+1}, s{PWU+1}")
    a(f"s_mov_b32 s14, {640*3456}"); a("s_mov_b32 s15, 0x20000")
    a("s_sub_u32 s39, s2, 108"); a("s_cmp_lt_u32 s2, 108"); a("s_cselect_b32 s39, s2, s39"); a("s_lshl_b32 s39, s39, 5")
    a("s_cmp_ge_u32 s2, 216"); a(f"s_cselect_b32 s39, {640*3456}, s39")
    a(f"v_lshrrev_b32 v{CA}, 1, v0"); a(f"v_mul_u32_u24 v{CA}, 3456, v{CA}"); a(f"v_and_b32 v{T+3}, 1, v0")
    a(f"v_lshl_add_u32 v{CA}, v{T+3}, 4, v{CA}"); a(f"v_add_u32 v{CA}, s39, v{CA}")
    srd(a,16,PWD,0,1728*1280); srd(a,20,PWO,0,640*1280); srd(a,24,PWS,WS_PO,0x780000)
    srd(a,28,PWG,0,640*3456); srd(a,48,PWU,0,640*3456)
    RS=T+44; RD=T+50; RB=T+56
    jobs=[(10,640,1280,200,0),(10,1728,1280,540,0),(10,1728,1280,540,1),(14,640,3456,560,0),(14,640,3456,560,1)]
    for n_,(nc,K,pitch,P,r) in enumerate(jobs):
        mh=lambda d:(2**32+d-1)//d
        a(f"s_mul_i32 s39, s2, {P}"); a(f"s_add_u32 s39, s39, {512*r}"); a(f"v_add_u32 v{T}, s39, v0")
        a(f"s_mov_b32 s44, {mh(nc):#x}"); a(f"v_mul_hi_u32 v{T+1}, v{T}, s44")
        a(f"v_mul_u32_u24 v{T+2}, {nc}, v{T+1}"); a(f"v_sub_u32 v{T+2}, v{T}, v{T+2}")
        a(f"s_mov_b32 s44, {mh(K):#x}"); a(f"v_mul_hi_u32 v{T+3}, v{T+1}, s44")
        a(f"v_mul_u32_u24 v{RS+n_}, {K}, v{T+3}"); a(f"v_sub_u32 v{T+1}, v{T+1}, v{RS+n_}")
        a(f"v_mul_u32_u24 v{T+1}, {pitch}, v{T+1}"); a(f"v_mul_u32_u24 v{T+3}, {nc}, v{T+3}"); a(f"v_add_u32 v{T+2}, v{T+2}, v{T+3}")
        a(f"v_lshl_add_u32 v{RS+n_}, v{T+2}, 4, v{T+1}"); a(f"v_lshlrev_b32 v{RD+n_}, 4, v{T}")
        if P-512*r<512:
            a(f"v_cmp_gt_u32 vcc, {P-512*r}, v0" if P-512*r>64 else f"v_cmp_gt_u32 vcc, {P-512*r}, v0"); a(f"v_mov_b32 v{T}, 0x7f000000"); a("s_nop 0")
            a(f"v_cndmask_b32 v{RS+n_}, v{T}, v{RS+n_}, vcc"); a(f"v_cndmask_b32 v{RD+n_}, v{T}, v{RD+n_}, vcc")
    moves=[(0,20,0),(1,16,WS_PD-WS_PO),(2,16,WS_PD-WS_PO),(3,28,WS_PG-WS_PO),(4,28,WS_PG-WS_PO),(3,48,WS_PU-WS_PO),(4,48,WS_PU-WS_PO)]
    assert RB%4==0 and RB+28<=248
    SEL=T+32
    a(f"v_and_b32 v{T+3}, 7, v1")
    for q in range(4):
        a(f"v_mov_b32 v{SEL+q}, 0"); a(f"v_cmp_eq_u32 vcc, {2*q}, v{T+3}"); a(f"v_mov_b32 v{T+1}, 0x3f80"); a("s_nop 0"); a(f"v_cndmask_b32 v{SEL+q}, v{SEL+q}, v{T+1}, vcc")
        a(f"v_cmp_eq_u32 vcc, {2*q+1}, v{T+3}"); a(f"v_mov_b32 v{T+1}, 0x3f800000"); a("s_nop 0"); a(f"v_cndmask_b32 v{SEL+q}, v{SEL+q}, v{T+1}, vcc")
    a("s_cmp_eq_u32 s38, 0"); a("s_cbranch_scc1 L_k2_w1a"); a("s_waitcnt vmcnt(4)"); a("s_branch L_k2_w1b"); a.lab("L_k2_w1a"); a("s_waitcnt vmcnt(12)"); a.lab("L_k2_w1b")
    for r in range(4):
        a(f"v_max3_f32 v{KM+r}, v{KM+r}, v{KM+4+r}, v{KM+8+r}"); a(f"v_max_f32 v{KM+r}, v{KM+r}, v{KM+12+r}")
    a("s_nop 1")
    for r in range(4): a(f"v_max_f32_dpp v{KM+r}, v{KM+r}, v{KM+r} row_ror:8 row_mask:0xf bank_mask:0xf")
    for r in range(4): a(f"ds_swizzle_b32 v{KM+4+r}, v{KM+r} offset:0x401F")
    a("s_waitcnt lgkmcnt(0)")
    for r in range(4): a(f"v_max_f32 v{KM+r}, v{KM+r}, v{KM+4+r}"); a(f"v_mov_b32 v{KM+4+r}, v{KM+r}")
    a("s_nop 1")
    for r in range(4): a(f"v_permlane32_swap_b32 v{KM+r}, v{KM+4+r}")
    for r in range(4): a(f"v_max_f32 v{KM+r}, v{KM+r}, v{KM+4+r}")
    a(f"v_mul_f32 v{KM+4}, v{KM}, v{KM}")
    for r in range(1,4): a(f"v_fmac_f32 v{KM+4}, v{KM+r}, v{KM+r}")
    a(f"v_and_b32 v{T+3}, 7, v1"); a(f"v_cmp_gt_u32 vcc, 5, v{T+3}"); a("s_nop 1"); a(f"v_cndmask_b32 v{KM+4}, 0, v{KM+4}, vcc")
    for rot in (1,2,4):
        a("s_nop 1"); a(f"v_add_f32_dpp v{KM+4}, v{KM+4}, v{KM+4} row_ror:{rot} row_mask:0xf bank_mask:0xf")
    KB=248
    a(f"v_sqrt_f32 v{KB}, v{KM+4}"); a("s_nop 0"); a(f"v_mul_f32 v{KB}, {F(1.03):#x}, v{KB}")
    a("s_cmp_eq_u32 s38, 0"); a("s_cbranch_scc1 L_k2_w2a"); a("s_waitcnt vmcnt(0)"); a("s_branch L_k2_w2b"); a.lab("L_k2_w2a"); a("s_waitcnt vmcnt(8)"); a.lab("L_k2_w2b")
    def setm(f1,mreg):
        a(f"v_sub_f32 v{T}, 0, v{mreg}"); a(f"v_and_b32 v{T+1}, 0xffff0000, v{T}"); a(f"v_sub_f32 v{T}, v{T}, v{T+1}")
        a(f"v_and_b32 v{T+2}, 0xffff0000, v{T}"); a(f"v_sub_f32 v{T}, v{T}, v{T+2}")
        a(f"v_lshrrev_b32 v{T+1}, 16, v{T+1}"); a(f"v_or_b32 v{f1+2}, v{T+1}, v{T+2}"); a(f"v_lshrrev_b32 v{f1+3}, 16, v{T}")
        a(f"v_cmp_eq_u32 vcc, 0, v{HI}"); a("s_nop 1")
        for r in range(4): a(f"v_cndmask_b32 v{f1+r}, 0, v{f1+r}, vcc")
    for (f0,f1) in ((QA0,QA1),(QB0,QB1)):
        a(f"v_cmp_eq_u32 vcc, 0, v{HI}"); a("s_nop 1")
        for r in range(2): a(f"v_cndmask_b32 v{f1+r}, 0, v{f1+r}, vcc")
        first=True
        for rg in [f0,f0+1,f0+2,f0+3,f1,f1+1]:
            a(f"v_lshlrev_b32 v{T}, 16, v{rg}"); a(f"v_and_b32 v{T+1}, 0xffff0000, v{rg}")
            if first: a(f"v_mul_f32 v{T+3}, v{T}, v{T}"); first=False
            else: a(f"v_fmac_f32 v{T+3}, v{T}, v{T}")
            a(f"v_fmac_f32 v{T+3}, v{T+1}, v{T+1}")
        a(f"v_mov_b32 v{T+2}, v{T+3}"); a("s_nop 1"); a(f"v_permlane32_swap_b32 v{T+3}, v{T+2}"); a(f"v_add_f32 v{T+3}, v{T+3}, v{T+2}")
        a(f"v_sqrt_f32 v{T+3}, v{T+3}"); a("s_nop 0"); a(f"v_mul_f32 v{T+3}, v{T+3}, v{KB}")
        setm(f1,T+3)
    a("s_cmp_eq_u32 s38, 0"); a("s_cbranch_scc1 L_k2_d1skip")
    dma(0)
    a.lab("L_k2_d1skip")
    mark(a,1)
    a.lab("L_k2_main")
    def rdK(t,st_):
        R=R0 if ((t>>3)&1)==0 else R1; o=(t&7)*2048
        for f in range(2): a(f"ds_read_b128 v[{KS[t&1]+4*f}:{KS[t&1]+4*f+3}], v{R} offset:{o+1024*f}")
    def rdV(t):
        R=R0 if ((t>>3)&1)==0 else R1; o=16384+(t&7)*2048
        for f in range(2): a(f"ds_read_b128 v[{VS[t&1]+4*f}:{VS[t&1]+4*f+3}], v{R} offset:{o+1024*f}")
    def qk(S,Q0,Q1,t,p):
        k=KS[t&1]
        if p==0: a(f"v_mfma_f32_32x32x16_bf16 v[{S}:{S+15}], v[{k}:{k+3}], v[{Q0}:{Q0+3}], 0")
        else: a(f"v_mfma_f32_32x32x16_bf16 v[{S}:{S+15}], v[{k+4}:{k+7}], v[{Q1}:{Q1+3}], v[{S}:{S+15}]")
    def pv(O,P,t,p):
        v=VS[t&1]+4*p; c=f"v[{O}:{O+15}]" if not(t==0 and p==0) else "0"
        a(f"v_mfma_f32_32x32x16_bf16 v[{O}:{O+15}], v[{v}:{v+3}], v[{P+4*p}:{P+4*p+3}], {c}")
    e=lambda S,i: a(f"v_exp_f32 v{S+i}, v{S+i}")
    c=lambda S,P,k: a(f"v_cvt_pk_bf16_f32 v{P+k}, v{S+2*k}, v{S+2*k+1}")
    a("s_cmp_eq_u32 s38, 0"); a("s_cbranch_scc0 L_k2_w3"); a("s_waitcnt vmcnt(0)"); a.lab("L_k2_w3")
    a("s_waitcnt lgkmcnt(0)"); a("s_barrier")
    rdK(0,0); rdV(0); a("s_waitcnt lgkmcnt(2)")
    qk(SA,QA0,QA1,0,0); qk(SA,QA0,QA1,0,1); a("s_nop 7"); a("s_nop 7")
    mark(a,2)
    NT=32
    def phase(X,PX,OX,Y,tX,tY,prev,mid):
        S=X
        if Y: qk(Y[0],Y[1],Y[2],tY,0)
        for i in range(4): e(S,i)
        if prev: pv(prev[0],prev[1],prev[2],1)
        mid()
        for i in range(4,8): e(S,i)
        c(S,PX,0); c(S,PX,1)
        if Y: qk(Y[0],Y[1],Y[2],tY,1)
        c(S,PX,2); c(S,PX,3)
        for i in range(8,12): e(S,i)
        pv(OX,PX,tX,0)
        for i in range(12,16): e(S,i)
        for k in range(4,8): c(S,PX,k)
    for t in range(NT):
        def midA():
            if t+1<NT and (t+1)%8==0:
                a(f"s_waitcnt vmcnt({ ({7:6,15:4,23:3} if PACK else {7:6,15:0,23:0})[t] }) lgkmcnt(0)"); a("s_barrier")
            if t%8<4 and t//8+1<4: dma2(t//8+1,t%8)
            def ldcl(i): a(f"s_mov_b32 s44, {256*3456*i}"); a(f"buffer_load_dwordx4 v[{CL+4*i}:{CL+4*i+3}], v{CA}, s[12:15], s44 offen")
            def ldr(n_): jb_,sr,db=moves[n_]; a(f"buffer_load_dwordx4 v[{RB+4*n_}:{RB+4*n_+3}], v{RS+jb_}, s[{sr}:{sr+3}], 0 offen")
            def str_(n_): jb_,sr,db=moves[n_]; a(f"s_mov_b32 s44, {db:#x}"); a(f"buffer_store_dwordx4 v[{RB+4*n_}:{RB+4*n_+3}], v{RD+jb_}, s[24:27], s44 offen"+os.environ.get('SC',' sc1'))
            if t==4: ldcl(0); ldcl(1)
            if t==5: ldcl(2); ldr(0)
            if t==6: ldr(1); ldr(2)
            if PACK:
                if t==12: ldr(3); ldr(4)
                if t==13: ldr(5); ldr(6)
                if t in (20,21,22): str_(t-20)
                if t in (24,25,26,27): str_(t-21)
            if t==16:
                for i in range(3):
                    a(f"v_mfma_f32_16x16x32_bf16 v[{KM}:{KM+3}], v[{CL+4*i}:{CL+4*i+3}], v[{SEL}:{SEL+3}], {'0' if i==0 else f'v[{KM}:{KM+3}]'}")
            if t==17:
                a(f"v_add_f32 v{KM}, v{KM}, v{KM+2}"); a(f"v_add_f32 v{KM+1}, v{KM+1}, v{KM+3}")
                a(f"v_and_b32 v{T}, 15, v1"); a(f"v_lshlrev_b32 v{T+1}, 2, v{T}"); a(f"v_add_u32 v{T+1}, {CSL}, v{T+1}")
                a("s_cmp_eq_u32 s60, 0"); a("s_cbranch_scc0 L_k2_nocsadd")
                a(f"v_cmp_gt_u32 vcc, 8, v{T}"); a("s_and_saveexec_b64 s[46:47], vcc")
                a(f"ds_add_f32 v{T+1}, v{KM}"); a(f"ds_add_f32 v{T+1}, v{KM+1} offset:32")
                a("s_mov_b64 exec, s[46:47]")
                a.lab("L_k2_nocsadd")
            if t==3: a("s_waitcnt vmcnt(8)"); a("s_barrier")
            if t+1<NT: rdK(t+1,0); rdV(t+1)
        if os.environ.get("ALT","0")!="0":
            a("s_cmp_eq_u32 s36, 0"); a(f"s_cbranch_scc1 L_k2_pr{t}"); a(f"s_setprio {(t+1)&1}"); a.lab(f"L_k2_pr{t}")
        a("s_waitcnt lgkmcnt(0)")
        phase(SA,PA,OA,(SB,QB0,QB1),t,t,(OB,PB,t-1) if t>0 else None,midA)
        if t+1<NT: a("s_waitcnt lgkmcnt(2)")
        phase(SB,PB,OB,(SA,QA0,QA1) if t+1<NT else None,t,t+1,(OA,PA,t),lambda:None)
    a("s_nop 1"); pv(OB,PB,NT-1,1)
    a("s_nop 7"); a("s_nop 7")
    mark(a,3)
    a("s_setprio 0")
    a("s_lshl_b32 s39, s35, 13"); a("s_mul_i32 s44, s36, 3072"); a("s_add_u32 s44, s44, s39"); a(f"v_add_u32 v{T}, s44, v{VD}")
    a("s_xor_b32 s44, s36, 1"); a("s_mul_i32 s44, s44, 3072"); a("s_add_u32 s44, s44, s39"); a(f"v_add_u32 v{T+1}, s44, v{VD}")
    a("s_cmp_eq_u32 s36, 0"); a("s_cbranch_scc1 L_k2_lo")
    for q in range(3): a(f"ds_write_b128 v{T}, v[{OA+4*q}:{OA+4*q+3}] offset:{q*1024}")
    for r in range(12): a(f"v_mov_b32 v{OA+r}, v{OB+r}")
    a("s_branch L_k2_cmb")
    a.lab("L_k2_lo")
    for q in range(3): a(f"ds_write_b128 v{T}, v[{OB+4*q}:{OB+4*q+3}] offset:{q*1024}")
    a.lab("L_k2_cmb")
    a("s_waitcnt lgkmcnt(0)"); a("s_barrier")
    for q in range(3): a(f"ds_read_b128 v[{SA+q*4}:{SA+q*4+3}], v{T+1} offset:{q*1024}")
    a("s_waitcnt lgkmcnt(0)")
    for r in range(12): a(f"v_add_f32 v{OA+r}, v{OA+r}, v{SA+r}")
    LA=T+2
    a(f"v_mov_b32 v{T+4}, v{OA+8}"); a(f"v_mov_b32 v{LA}, v{OA+8}"); a("s_nop 1"); a(f"v_permlane32_swap_b32 v{T+4}, v{LA}")
    a(f"v_mov_b32 v{T+6}, {F(2.0**-90):#x}"); a("s_nop 0")
    a(f"v_cmp_nge_f32 vcc, v{LA}, v{T+6}"); a("s_nop 1")
    a("s_cbranch_vccz L_k2_chk")
    a(f"v_mov_b32 v{T+4}, 1"); a(f"v_mov_b32 v{T+5}, {FLAG}"); a(f"ds_write_b32 v{T+5}, v{T+4}"); a("s_waitcnt lgkmcnt(0)")
    a.lab("L_k2_chk")
    a(f"v_rcp_f32 v{LA}, v{LA}")
    OADR=T+10
    a("s_lshl_b32 s39, s34, 3"); a("s_lshl_b32 s44, s35, 1"); a("s_add_u32 s39, s39, s44"); a("s_add_u32 s39, s39, s36"); a("s_mul_i32 s39, s39, 20")
    a(f"v_lshrrev_b32 v{T+4}, 4, v{TOK}"); a(f"v_mul_u32_u24 v{T+4}, 20480, v{T+4}"); a(f"v_and_b32 v{T+5}, 15, v{TOK}")
    a(f"v_lshl_add_u32 v{T+4}, v{T+5}, 4, v{T+4}"); a(f"v_add_u32 v{T+4}, {WS_O:#x}, v{T+4}")
    for q in range(3):
        a(f"v_lshl_add_u32 v{T+5}, v{HI}, 2, s39")
        if q: a(f"v_add_u32 v{T+5}, {8*q}, v{T+5}")
        a(f"v_lshrrev_b32 v{T+6}, 5, v{T+5}"); a(f"v_lshl_add_u32 v{OADR+q}, v{T+6}, 10, v{T+4}")
        a(f"v_bfe_u32 v{T+6}, v{T+5}, 2, 2"); a(f"v_lshl_add_u32 v{OADR+q}, v{T+6}, 8, v{OADR+q}")
        a(f"v_bfe_u32 v{T+6}, v{T+5}, 4, 1"); a(f"v_lshl_add_u32 v{OADR+q}, v{T+6}, 3, v{OADR+q}")
    for r in range(12): a(f"v_mul_f32 v{OA+r}, v{OA+r}, v{LA}")
    for q in range(3):
        a(f"v_cvt_pk_bf16_f32 v{SA+2*q}, v{OA+4*q}, v{OA+4*q+1}"); a(f"v_cvt_pk_bf16_f32 v{SA+2*q+1}, v{OA+4*q+2}, v{OA+4*q+3}")
    a("s_barrier")
    a(f"v_mov_b32 v{T+5}, {FLAG}"); a(f"ds_read_b32 v{T+4}, v{T+5}")
    a(f"v_lshlrev_b32 v{T+8}, 2, v1"); a(f"v_add_u32 v{T+7}, {CSL}, v{T+8}"); a(f"ds_read_b32 v{T+6}, v{T+7}")
    a("s_waitcnt lgkmcnt(0)"); a(f"v_readfirstlane_b32 s44, v{T+4}")
    a("s_add_u32 s44, s44, s60"); a("s_cmp_eq_u32 s44, 1"); a("s_cbranch_scc0 L_k2_fin")
    a("s_cmp_eq_u32 s60, 0"); a("s_cbranch_scc1 L_k2_fallback")
    a.lab("L_k2_fin")
    for q in range(2): a(f"buffer_store_dwordx2 v[{SA+2*q}:{SA+2*q+1}], v{OADR+q}, s[8:11], 0 offen")
    a(f"v_cmp_eq_u32 vcc, 0, v{HI}"); a("s_and_saveexec_b64 s[46:47], vcc")
    a(f"buffer_store_dwordx2 v[{SA+4}:{SA+5}], v{OADR+2}, s[8:11], 0 offen")
    a("s_mov_b64 exec, s[46:47]")
    a("s_cmp_eq_u32 s32, 4"); a(f"s_cbranch_scc0 L_{name}_end")
    a("s_cmp_lt_u32 s2, 216"); a(f"s_cbranch_scc0 L_{name}_end")
    a("s_lshl_b32 s39, s2, 6"); a(f"s_add_u32 s39, s39, {WS_CS:#x}"); a(f"v_add_u32 v{T+5}, s39, v{T+8}")
    a("v_cmp_gt_u32 vcc, 16, v1"); a("s_and_saveexec_b64 s[46:47], vcc")
    a(f"buffer_store_dword v{T+6}, v{T+5}, s[8:11], 0 offen")
    a(f"s_branch L_{name}_end")
    a.lab("L_k2_fallback")
    a("s_mov_b32 s60, 1")
    for f1 in (QA1,QB1):
        a(f"v_mov_b32 v{f1+2}, 0"); a(f"v_mov_b32 v{f1+3}, 0")
    a(f"v_mov_b32 v{T+8}, 0xff800000"); a(f"v_mov_b32 v{T+9}, 0xff800000")
    a("s_lshl_b32 s44, s36, 16"); a("s_add_u32 s45, s44, 65536")
    a.lab("L_k2_mx")
    a(f"buffer_load_dwordx4 v[{KS[0]}:{KS[0]+3}], v{VD}, s[4:7], s44 offen"); a(f"buffer_load_dwordx4 v[{KS[0]+4}:{KS[0]+7}], v{VD}, s[4:7], s44 offen offset:1024")
    a("s_waitcnt vmcnt(0)")
    qk(SA,QA0,QA1,0,0); qk(SA,QA0,QA1,0,1); qk(SB,QB0,QB1,0,0); qk(SB,QB0,QB1,0,1); a("s_nop 7"); a("s_nop 7")
    for S,M in ((SA,T+8),(SB,T+9)):
        for i in range(0,16,2): a(f"v_max3_f32 v{M}, v{S+i}, v{S+i+1}, v{M}")
    a("s_add_u32 s44, s44, 2048"); a("s_cmp_lt_u32 s44, s45"); a("s_cbranch_scc1 L_k2_mx")
    for M in (T+8,T+9):
        a(f"v_mov_b32 v{T+4}, v{M}"); a("s_nop 1"); a(f"v_permlane32_swap_b32 v{M}, v{T+4}"); a(f"v_max_f32 v{M}, v{M}, v{T+4}")
    a("s_lshl_b32 s44, s32, 9"); a(f"s_add_u32 s44, s44, {MXL}"); a(f"v_lshlrev_b32 v{T+4}, 2, v1"); a(f"v_add_u32 v{T+5}, s44, v{T+4}")
    a(f"ds_write_b32 v{T+5}, v{T+8}"); a(f"ds_write_b32 v{T+5}, v{T+9} offset:256"); a("s_waitcnt lgkmcnt(0)"); a("s_barrier")
    a("s_xor_b32 s45, s32, 4"); a("s_lshl_b32 s45, s45, 9"); a(f"s_add_u32 s45, s45, {MXL}"); a(f"v_add_u32 v{T+5}, s45, v{T+4}")
    a(f"ds_read_b32 v{T+6}, v{T+5}"); a(f"ds_read_b32 v{T+7}, v{T+5} offset:256"); a("s_waitcnt lgkmcnt(0)")
    a(f"v_max_f32 v{T+8}, v{T+8}, v{T+6}"); a(f"v_max_f32 v{T+9}, v{T+9}, v{T+7}")
    setm(QA1,T+8); setm(QB1,T+9)
    dma(0)
    a("s_branch L_k2_main")
    tail(a,name,256)
    return a.text(), 131072+256+8*512

def proj(name,K,pitchA,xptr,xoff,xbytes,wptr,resptr,resoff,outptr,outoff,stats):
    a=A(); head(a,name,256); tile_map_32x8(a)
    srd(a,4,xptr,xoff,xbytes); (srd(a,8,PWS,wptr,K*1280) if PACK else srd(a,8,{WS_PO:PWO,WS_PD:PWD}[wptr],0,K*1280))
    srd(a,20,outptr,outoff,ACT_BYTES); srd(a,24,resptr,resoff,ACT_BYTES)
    if stats: srd(a,28,PWS,WS_ST,2048*64)
    a(f"s_mul_i32 s34, s51, {160*K if PACK else 160}")
    g=Gemm(a,64,K,pitchA,[(10,160 if PACK else 1280,5)],NS=12,PD=2,free='prev',PX=(8 if K==640 else 12)); g.rot=(0,0); g.bs=BS[name]
    a("s_cmp_ge_u32 s32, 4"); a(f"s_cbranch_scc1 L_{name}_prod")
    nv=g.rdaddr(2); nv=(nv+3)//4*4
    ACC=nv; nv+=20; RES=nv; nv+=10; TOK=nv; OFF=nv+1; G=nv+2; OFFF=nv+3; nv+=4; nv=(nv+3)//4*4
    a(f"v_and_b32 v{TOK}, 15, v1"); a("s_lshl_b32 s36, s32, 4"); a("s_add_u32 s36, s36, s33"); a(f"v_add_u32 v{TOK}, s36, v{TOK}")
    a(f"v_lshrrev_b32 v{G}, 4, v1"); a(f"v_mul_u32_u24 v{OFF}, 1280, v{TOK}"); a(f"v_lshl_add_u32 v{OFF}, v{G}, 3, v{OFF}"); a("s_mul_i32 s37, s51, 160"); a(f"v_add_u32 v{OFF}, s37, v{OFF}")
    a("s_lshr_b32 s36, s36, 4"); a("s_mul_i32 s36, s36, 20480"); a(f"v_lshl_add_u32 v{OFFF}, v1, 4, s36")
    a("s_mul_i32 s36, s51, 5")
    for j in range(5):
        a(f"s_add_u32 s37, s36, {j}"); a("s_lshr_b32 s38, s37, 1"); a("s_lshl_b32 s38, s38, 10"); a("s_and_b32 s37, s37, 1"); a("s_lshl_b32 s37, s37, 3"); a(f"s_add_u32 s{56+j}, s38, s37")
    rowm=lambda j: f"v{OFF}, s[%d:%d], 0 offen offset:{32*j}"
    frag=lambda j: f"v{OFFF}, s[%d:%d], s{56+j} offen"
    radr,oadr=(rowm,frag) if stats else (frag,rowm)
    def ad():
        for j in range(5): a(f"buffer_load_dwordx2 v[{RES+2*j}:{RES+2*j+1}], "+radr(j)%(24,27))
    g.after_dma=ad
    g.main(nv,lambda tb,j:f"v[{ACC+4*j}:{ACC+4*j+3}]")
    T=(g.nfr+3)//4*4
    a("s_nop 7"); a("s_waitcnt vmcnt(0)")
    for j in range(5):
        for h in range(2):
            a(f"v_lshlrev_b32 v{T}, 16, v{RES+2*j+h}"); a(f"v_and_b32 v{T+1}, 0xffff0000, v{RES+2*j+h}")
            a(f"v_add_f32 v{ACC+4*j+2*h}, v{ACC+4*j+2*h}, v{T}"); a(f"v_add_f32 v{ACC+4*j+2*h+1}, v{ACC+4*j+2*h+1}, v{T+1}")
            a(f"v_cvt_pk_bf16_f32 v{RES+2*j+h}, v{ACC+4*j+2*h}, v{ACC+4*j+2*h+1}")
        a(f"buffer_store_dwordx2 v[{RES+2*j}:{RES+2*j+1}], "+oadr(j)%(20,23))
    if stats:
        for j in range(5):
            for h in range(2):
                a(f"v_lshlrev_b32 v{ACC+4*j+2*h}, 16, v{RES+2*j+h}"); a(f"v_and_b32 v{ACC+4*j+2*h+1}, 0xffff0000, v{RES+2*j+h}")
        def red(r):
            a(f"ds_swizzle_b32 v{T+3}, v{r} offset:0x401F"); a("s_waitcnt lgkmcnt(0)"); a(f"v_add_f32 v{r}, v{r}, v{T+3}")
            a(f"v_mov_b32 v{T+3}, v{r}"); a("s_nop 1"); a(f"v_permlane32_swap_b32 v{r}, v{T+3}"); a(f"v_add_f32 v{r}, v{r}, v{T+3}")
        a(f"v_add_f32 v{T}, v{ACC}, v{ACC+1}")
        for i in range(2,20): a(f"v_add_f32 v{T}, v{T}, v{ACC+i}")
        red(T)
        a(f"v_mul_f32 v{T+2}, {F(1/80):#x}, v{T}")
        for i in range(20):
            a(f"v_sub_f32 v{ACC+i}, v{ACC+i}, v{T+2}")
            a(f"v_mul_f32 v{T+1}, v{ACC}, v{ACC}" if i==0 else f"v_fmac_f32 v{T+1}, v{ACC+i}, v{ACC+i}")
        red(T+1)
        a(f"v_lshlrev_b32 v{T+2}, 6, v{TOK}"); a("s_lshl_b32 s36, s51, 3"); a(f"v_add_u32 v{T+2}, s36, v{T+2}")
        a(f"v_cmp_eq_u32 vcc, 0, v{G}"); a("s_and_saveexec_b64 s[40:41], vcc")
        a(f"buffer_store_dwordx2 v[{T}:{T+1}], v{T+2}, s[28:31], 0 offen")
    a(f"s_branch L_{name}_end")
    g.producer(name,DEPTH[name])
    tail(a,name,max(T+8,g.pmax))
    return a.text(), g.lds
def k3(): return proj("k3_kernel",640,1280,PWS,WS_O,ACT_BYTES,WS_PO,PX,0,PWS,WS_H,True)
def k5(): return proj("k5_kernel",1728,3456,PWS,WS_HH,2048*3456,WS_PD,PWS,WS_H,POUT,0,False)
def k4():
    a=A(); name="k4_kernel"; head(a,name,256)
    a("s_and_b32 s36, s2, 7"); a("s_lshr_b32 s37, s2, 3")
    a("s_and_b32 s38, s36, 1"); a("s_lshl_b32 s38, s38, 3"); a("s_and_b32 s39, s37, 7"); a("s_add_u32 s38, s38, s39"); a("s_lshl_b32 s33, s38, 7")
    a("s_lshr_b32 s36, s36, 1"); a("s_lshl_b32 s36, s36, 2"); a("s_lshr_b32 s37, s37, 3"); a("s_add_u32 s51, s36, s37")
    srd(a,4,PWS,WS_H,ACT_BYTES); (srd(a,8,PWS,WS_PG,16*640*224),srd(a,12,PWS,WS_PU,16*640*224)) if PACK else (srd(a,8,PWG,0,640*3456),srd(a,12,PWU,0,640*3456))
    srd(a,20,PWS,WS_HH,2048*3456); srd(a,24,PWS,WS_ST,2048*64); srd(a,28,PWS,WS_CS,3456*4)
    a(f"s_mul_i32 s34, s51, {224*640 if PACK else 224}"); a("s_mov_b32 s35, s34")
    a("s_mov_b32 s55, s39"); a("s_mov_b32 s56, s37")
    g=Gemm(a,128,640,1280,[(14,224 if PACK else 3456,7),(14,224 if PACK else 3456,7)],NS=5,PD=1,free='cur',jb=4,PX=4); g.rot=(0,0)
    a("s_cmp_ge_u32 s32, 4"); a(f"s_cbranch_scc1 L_{name}_prod")
    ST=200
    CSO=g.lds
    TOK=[2,3]; G=4; MEAN=[5,6]; RS2=[7,8]
    a(f"v_and_b32 v{TOK[0]}, 15, v1"); a("s_lshl_b32 s36, s32, 5"); a("s_add_u32 s36, s36, s33"); a(f"v_add_u32 v{TOK[0]}, s36, v{TOK[0]}")
    a(f"v_add_u32 v{TOK[1]}, 16, v{TOK[0]}"); a(f"v_lshrrev_b32 v{G}, 4, v1")
    for tb in range(2):
        a(f"v_lshlrev_b32 v9, 6, v{TOK[tb]}")
        for q in range(4): a(f"buffer_load_dwordx4 v[{ST+16*tb+4*q}:{ST+16*tb+4*q+3}], v9, s[24:27], 0 offen offset:{16*q}")
    a("s_mul_i32 s36, s51, 448"); a("v_lshlrev_b32 v9, 2, v0"); a("v_add_u32 v240, s36, v9")
    a(f"v_add_u32 v241, {(1728-112)*4}, v240"); a("v_cmp_gt_u32 vcc, 112, v0"); a("s_nop 1"); a("v_cndmask_b32 v240, v241, v240, vcc")
    a("buffer_load_dword v241, v240, s[28:31], 0 offen"); a(f"v_add_u32 v240, {CSO}, v9")
    nv=g.rdaddr(10); nv=(nv+3)//4*4
    ACC=nv; nv+=112
    def ad():
        a("s_waitcnt vmcnt(0)")
        a("ds_write_b32 v240, v241")
        for tb in range(2):
            b=ST+16*tb; T=232
            a(f"v_add_f32 v{T}, v{b}, v{b+2}")
            for i in range(2,8): a(f"v_add_f32 v{T}, v{T}, v{b+2*i}")
            a(f"v_mul_f32 v{MEAN[tb]}, {F(1/640):#x}, v{T}")
            a(f"v_add_f32 v{T+1}, v{b+1}, v{b+3}")
            for i in range(2,8): a(f"v_add_f32 v{T+1}, v{T+1}, v{b+2*i+1}")
            a(f"v_mov_b32 v{T+3}, {F(1/80):#x}"); a(f"v_mov_b32 v{T+4}, {F(80.0):#x}")
            for i in range(8):
                a(f"v_fma_f32 v{T+2}, v{b+2*i}, v{T+3}, -v{MEAN[tb]}"); a(f"v_mul_f32 v{T+2}, v{T+2}, v{T+2}"); a(f"v_fmac_f32 v{T+1}, v{T+2}, v{T+4}")
            a(f"v_mul_f32 v{T+1}, {F(1/640):#x}, v{T+1}"); rbf(a,T+1); a(f"v_add_f32 v{T+1}, {F(1e-5):#x}, v{T+1}"); rbf(a,T+1)
            a(f"v_sqrt_f32 v{T+1}, v{T+1}"); rbf(a,MEAN[tb]); rbf(a,T+1); a(f"v_mul_f32 v{T+1}, v{T+1}, v{T+1}")
            a(f"v_rcp_f32 v{RS2[tb]}, v{T+1}")
    g.after_dma=ad
    g.main(nv,lambda tb,j:f"v[{ACC+(tb*14+j)*4}:{ACC+(tb*14+j)*4+3}]")
    assert g.nfr<=232 and nv<=ST, (g.nfr,nv)
    T=nv; OFF=[T,T+1]; CA=T+2; C=T+4; PKM=C+56; PKR=PKM+4; TMP=PKR+4
    a("s_lshr_b32 s36, s33, 4"); a("s_lshl_b32 s37, s32, 1"); a("s_add_u32 s36, s36, s37"); a("s_mul_i32 s36, s36, 55296")
    a(f"v_lshl_add_u32 v{OFF[0]}, v1, 4, s36"); a(f"v_add_u32 v{OFF[1]}, 55296, v{OFF[0]}")
    a("s_mul_i32 s36, s51, 7"); a("s_lshr_b32 s38, s36, 1"); a("s_lshl_b32 s56, s38, 10")
    a(f"v_lshlrev_b32 v{CA}, 4, v{G}"); a(f"v_add_u32 v{CA}, {CSO}, v{CA}")
    for j in range(7):
        a(f"ds_read_b128 v[{C+8*j}:{C+8*j+3}], v{CA} offset:{64*j}"); a(f"ds_read_b128 v[{C+8*j+4}:{C+8*j+7}], v{CA} offset:{448+64*j}")
    assert C+56<=256
    a("s_nop 7")
    for tb in range(2):
        a(f"v_mov_b32 v{PKM+2*tb}, v{MEAN[tb]}"); a(f"v_mov_b32 v{PKM+2*tb+1}, v{MEAN[tb]}"); a(f"v_mov_b32 v{PKR+2*tb}, v{RS2[tb]}"); a(f"v_mov_b32 v{PKR+2*tb+1}, v{RS2[tb]}")
    def tile(j,tb,dst):
        ag=ACC+(tb*14+j)*4; au=ACC+(tb*14+7+j)*4
        for r in (0,2):
            a(f"v_pk_fma_f32 v[{ag+r}:{ag+r+1}], v[{PKM+2*tb}:{PKM+2*tb+1}], v[{C+8*j+r}:{C+8*j+r+1}], v[{ag+r}:{ag+r+1}] neg_lo:[1,0,0] neg_hi:[1,0,0]")
            a(f"v_pk_fma_f32 v[{au+r}:{au+r+1}], v[{PKM+2*tb}:{PKM+2*tb+1}], v[{C+8*j+4+r}:{C+8*j+4+r+1}], v[{au+r}:{au+r+1}] neg_lo:[1,0,0] neg_hi:[1,0,0]")
        for r in (0,2): a(f"v_pk_mul_f32 v[{ag+r}:{ag+r+1}], v[{ag+r}:{ag+r+1}], v[{au+r}:{au+r+1}]")
        for r in (0,2): a(f"v_pk_mul_f32 v[{ag+r}:{ag+r+1}], v[{ag+r}:{ag+r+1}], v[{PKR+2*tb}:{PKR+2*tb+1}]")
        a(f"v_cvt_pk_bf16_f32 v{dst}, v{ag}, v{ag+1}"); a(f"v_cvt_pk_bf16_f32 v{dst+1}, v{ag+2}, v{ag+3}")
    a("s_waitcnt lgkmcnt(0)")
    a("s_bitcmp1_b32 s51, 0"); a("s_cbranch_scc1 L_k4_odd")
    for par in (0,1):
        if par: a.lab("L_k4_odd")
        groups=[(0,1),(2,3),(4,5),(6,)] if par==0 else [(0,),(1,2),(3,4),(5,6)]
        for gi,grp in enumerate(groups):
            if par==1 and gi==2: a("s_cmp_eq_u32 s51, 15"); a(f"s_cbranch_scc1 L_{name}_end")
            a(f"s_add_u32 s57, s56, {gi*1024}")
            for tb in range(2):
                D=ACC+(tb*14+7+grp[0])*4
                if len(grp)==2:
                    E=TMP+2*tb
                    tile(grp[1],tb,E); tile(grp[0],tb,D)
                    a(f"v_mov_b32 v{D+2}, v{E}"); a(f"v_mov_b32 v{D+3}, v{E+1}")
                    a(f"buffer_store_dwordx4 v[{D}:{D+3}], v{OFF[tb]}, s[20:23], s57 offen")
                else:
                    tile(grp[0],tb,D)
                    a(f"buffer_store_dwordx2 v[{D}:{D+1}], v{OFF[tb]}, s[20:23], s57 offen offset:{8*par}")
        a(f"s_branch L_{name}_end")
    g.producer(name,DEPTH[name])
    tail(a,name,256)
    return a.text(), g.lds+1024
def build(kernels):
    hdr=open("cdna_kernels/"+NAME+".s.ref").read().split("; Override launch")[0]
    body=""; lines=""
    for fn,grid,blk in kernels:
        t,lds=fn(); nm=fn.__name__+"_kernel"
        if fn.__name__[1] in os.environ.get("WT",WT_DEFAULT):
            t="\n".join((l+" sc1" if ("buffer_store" in l and " sc1" not in l) else l) for l in t.split("\n"))
        lines+=f"; @launch kernel={nm} grid=({grid},1,1) block=({blk},1,1) lds={lds}\n"
        body+=t+"\n"
    return hdr+lines+'.amdgcn_target "amdgcn-amd-amdhsa--gfx950"\n.text\n'+body
if __name__=="__main__":
    ks=[(k1,256,512)]
    for nm,gr,bl in (("k2",256,512),("k3",256,512),("k4",256,512),("k5",256,512)):
        if nm in globals(): ks.append((globals()[nm],gr,bl))
    out=sys.argv[1] if len(sys.argv)>1 else "cdna_kernels/"+NAME+".s"
    open(out,"w").write(build(ks))
```
